```python
import torch

def _softmax(x, axis=-1):
    return torch.softmax(x, dim=axis)
def _gelu(x):
    return torch.nn.functional.gelu(x, approximate="tanh")
def _silu(x):
    return torch.nn.functional.silu(x)
def _sigmoid(x):
    return torch.sigmoid(x)
def _layernorm(x, axis=-1, eps=1e-5):
    m = x.mean(dim=axis, keepdim=True)
    v = x.var(dim=axis, keepdim=True, unbiased=False)
    return (x - m) / torch.sqrt(v + eps)
def _scatter_add(tgt, idx, src, axis=0):
    return tgt.clone().index_add_(axis, idx, src)
def _segment_sum(src, seg, n):
    out = torch.zeros((n,) + src.shape[1:], dtype=src.dtype)
    return out.index_add_(0, seg, src)
def _pad(x, pw):
    flat = tuple(v for pair in reversed(pw) for v in pair)
    return torch.nn.functional.pad(x, flat)

kernel_name = 'standalone__geglu_ffn__sampling'

def setup_inputs():

    _w = (lambda a: (lambda t: t.to(torch.bfloat16) if t.is_floating_point() else t)(torch.as_tensor(a)))
    B, S, D, F = 8, 8, 1024, 3584
    return {
        "x": _w((lambda *s: torch.randn(*s, dtype=torch.bfloat16) * 0.05)(B, S, D)),
        "w_gate": _w((lambda *s: torch.randn(*s, dtype=torch.bfloat16) * 0.05)(D, F)),
        "w_up": _w((lambda *s: torch.randn(*s, dtype=torch.bfloat16) * 0.05)(D, F)),
        "w_down": _w((lambda *s: torch.randn(*s, dtype=torch.bfloat16) * 0.05)(F, D)),
    }

def reference(x, w_gate, w_up, w_down):
    return (_gelu(x @ w_gate) * (x @ w_up)) @ w_down
```

```python
import sys
out = []
def e(s=""):
    out.append(s)

HDR = open('standalone__geglu_ffn__sampling.s.ref').read().split('\n')
for l in HDR[:8]:
    e(l)
e("; @launch kernel=p1_kernel grid=(224,1,1) block=(256,1,1) lds=65536")
e("; @launch kernel=p2_kernel grid=(256,1,1) block=(256,1,1) lds=28672")
e("; @launch kernel=p3_kernel grid=(256,1,1) block=(64,1,1) lds=0")
e('.amdgcn_target "amdgcn-amd-amdhsa--gfx950"')
e(".text")

WBYTES = 1024*3584*2
H_OFF = 0
P_OFF = 1<<20

def srd(base, ptr, nbytes):
    e(f"    s_mov_b32 s{base}, s{ptr}")
    e(f"    s_and_b32 s{base+1}, s{ptr+1}, 0xffff")
    e(f"    s_mov_b32 s{base+2}, {nbytes}")
    e(f"    s_mov_b32 s{base+3}, 0x00020000")

def kstart(name):
    e(f".globl {name}")
    e(".p2align 8")
    e(f".type {name},@function")
    e(f"{name}:")

kstart("p1_kernel")
e("    s_cmp_ge_u32 s2, 224")
e("    s_cbranch_scc1 L_p1_done")
e("    s_load_dwordx4 s[4:7], s[0:1], 0     ; x, wg")
e("    s_load_dwordx2 s[8:9], s[0:1], 16    ; wu")
e("    s_load_dwordx2 s[10:11], s[0:1], 48  ; ws")
e("    v_lshrrev_b32 v1, 6, v0")
e("    v_and_b32 v2, 63, v0                 ; lane")
e("    v_readfirstlane_b32 s3, v1")
e("    s_and_b32 s30, s2, 7")
e("    s_lshr_b32 s31, s2, 3")
e("    s_mul_i32 s30, s30, 28")
e("    s_add_u32 s30, s30, s31")
e("    v_lshrrev_b32 v3, 1, v2              ; p")
e("    v_bfe_u32 v4, v3, 2, 2")
e("    v_lshlrev_b32 v4, 3, v4")
e("    v_and_b32 v5, 3, v3")
e("    v_add_u32 v4, v4, v5")
e("    v_lshrrev_b32 v5, 4, v3")
e("    v_lshl_add_u32 v4, v5, 2, v4         ; k(p)")
e("    v_mul_u32_u24 v4, 7168, v4")
e("    v_and_b32 v5, 1, v2")
e("    v_lshl_add_u32 v4, v5, 4, v4")
e("    s_lshl_b32 s31, s30, 5")
e("    v_add_u32 v4, s31, v4                ; v4 = W voffset")
e("    v_and_b32 v5, 15, v2")
e("    s_lshl_b32 s31, s3, 4")
e("    v_add_u32 v5, s31, v5")
e("    v_lshlrev_b32 v5, 11, v5")
e("    v_lshrrev_b32 v6, 4, v2")
e("    v_lshl_add_u32 v5, v6, 4, v5         ; v5 = x voffset")
e("    v_lshlrev_b32 v6, 3, v2")
e("    s_waitcnt lgkmcnt(0)")
srd(12, 4, 64*1024*2)
srd(16, 6, WBYTES)
srd(20, 8, WBYTES)
srd(24, 10, 1<<28)
e("    s_mul_i32 s32, s3, %d" % (2*32*7168))
e("    s_lshl_b32 s33, s3, 12")
XR = 16
for c in range(4):
    for i in range(2):
        e(f"    s_add_u32 s34, s32, {(8*c+i)*32*7168}")
        e(f"    s_add_u32 m0, s33, {(8*c+i)*2048}")
        e("    s_nop 0")
        e("    buffer_load_dwordx4 v4, s[16:19], s34 offen lds")
        e(f"    s_add_u32 m0, s33, {(8*c+i)*2048+1024}")
        e("    s_nop 0")
        e("    buffer_load_dwordx4 v4, s[20:23], s34 offen lds")
    for s in range(8*c, 8*c+8):
        e(f"    buffer_load_dwordx4 v[{XR+4*s}:{XR+4*s+3}], v5, s[12:15], 0 offen offset:{s*64}")
for r in range(8, 16):
    e(f"    v_mov_b32 v{r}, 0")
BR = 144
for c in range(4):
    e(f"    s_waitcnt vmcnt({36-12*c})")
    e("    s_barrier")
    for i in range(8):
        s = 8*c+i
        b = BR+8*i
        e(f"    ds_read_b64_tr_b16 v[{b}:{b+1}], v6 offset:{s*2048}")
        e(f"    ds_read_b64_tr_b16 v[{b+2}:{b+3}], v6 offset:{s*2048+512}")
        e(f"    ds_read_b64_tr_b16 v[{b+4}:{b+5}], v6 offset:{s*2048+1024}")
        e(f"    ds_read_b64_tr_b16 v[{b+6}:{b+7}], v6 offset:{s*2048+1536}")
        if i % 2 == 1:
            e("    s_waitcnt lgkmcnt(0)")
            for ii in (i-1, i):
                ss = 8*c+ii
                bb = BR+8*ii
                e(f"    v_mfma_f32_16x16x32_bf16 v[8:11], v[{bb}:{bb+3}], v[{XR+4*ss}:{XR+4*ss+3}], v[8:11]")
                e(f"    v_mfma_f32_16x16x32_bf16 v[12:15], v[{bb+4}:{bb+7}], v[{XR+4*ss}:{XR+4*ss+3}], v[12:15]")
e("    s_nop 7")
e("    s_nop 1")
e("    s_mov_b32 s36, 0xc0135761            ; c1 = -2.3022082")
e("    s_mov_b32 s37, 0xbdd2d3e8            ; c2 = -0.10294324")
e("    v_cvt_pk_bf16_f32 v16, v8, v9")
e("    v_cvt_pk_bf16_f32 v17, v10, v11")
e("    v_cvt_pk_bf16_f32 v18, v12, v13")
e("    v_cvt_pk_bf16_f32 v19, v14, v15")
e("    v_lshlrev_b32 v8, 16, v16")
e("    v_and_b32 v9, 0xffff0000, v16")
e("    v_lshlrev_b32 v10, 16, v17")
e("    v_and_b32 v11, 0xffff0000, v17")
e("    v_lshlrev_b32 v12, 16, v18")
e("    v_and_b32 v13, 0xffff0000, v18")
e("    v_lshlrev_b32 v14, 16, v19")
e("    v_and_b32 v15, 0xffff0000, v19")
e("    v_mov_b32 v24, s36")
for r in range(4):
    e(f"    v_mul_f32 v{16+r}, v{8+r}, v{8+r}")
for r in range(4):
    e(f"    v_fma_f32 v{16+r}, v{16+r}, s37, v24")
for r in range(4):
    e(f"    v_mul_f32 v{16+r}, v{16+r}, v{8+r}")
for r in range(4):
    e(f"    v_exp_f32 v{16+r}, v{16+r}")
e("    s_nop 0")
for r in range(4):
    e(f"    v_add_f32 v{16+r}, 1.0, v{16+r}")
for r in range(4):
    e(f"    v_rcp_f32 v{16+r}, v{16+r}")
e("    s_nop 0")
for r in range(4):
    e(f"    v_mul_f32 v{16+r}, v{16+r}, v{8+r}")
e("    v_cvt_pk_bf16_f32 v20, v16, v17")
e("    v_cvt_pk_bf16_f32 v21, v18, v19")
e("    v_lshlrev_b32 v16, 16, v20")
e("    v_and_b32 v17, 0xffff0000, v20")
e("    v_lshlrev_b32 v18, 16, v21")
e("    v_and_b32 v19, 0xffff0000, v21")
for r in range(4):
    e(f"    v_mul_f32 v{16+r}, v{16+r}, v{12+r}")
e("    v_cvt_pk_bf16_f32 v20, v16, v17")
e("    v_cvt_pk_bf16_f32 v21, v18, v19")
e("    s_lshl_b32 s34, s30, 11")
e("    s_lshl_b32 s35, s3, 9")
e("    s_add_u32 s34, s34, s35")
e(f"    buffer_store_dwordx2 v[20:21], v6, s[24:27], s34 offen offset:{H_OFF}")
e("L_p1_done:")
e("    s_endpgm")

kstart("p2_kernel")
e("    s_cmp_ge_u32 s2, 256")
e("    s_cbranch_scc1 L_p2_done")
e("    s_load_dwordx2 s[4:5], s[0:1], 24    ; wd")
e("    s_load_dwordx2 s[10:11], s[0:1], 48  ; ws")
e("    v_lshrrev_b32 v1, 6, v0")
e("    v_and_b32 v2, 63, v0                 ; lane")
e("    v_readfirstlane_b32 s3, v1")
e("    s_and_b32 s30, s2, 7                 ; ks")
e("    s_lshr_b32 s31, s2, 3                ; nt")
e("    v_bfe_u32 v3, v2, 1, 4")
e("    v_lshlrev_b32 v3, 11, v3")
e("    v_lshrrev_b32 v4, 5, v2")
e("    v_lshl_add_u32 v3, v4, 5, v3")
e("    v_and_b32 v4, 1, v2")
e("    v_lshl_add_u32 v3, v4, 4, v3")
e("    s_lshl_b32 s32, s31, 6")
e("    v_add_u32 v3, s32, v3")
e("    v_lshlrev_b32 v6, 3, v2              ; l*8")
e("    s_waitcnt lgkmcnt(0)")
srd(12, 4, WBYTES)
srd(24, 10, 1<<28)
e(f"    s_mul_i32 s32, s30, {448*2048}")
e(f"    s_mul_i32 s33, s3, {7*16*2048}")
e("    s_add_u32 s32, s32, s33")
e(f"    s_mul_i32 s33, s3, {7*1024}")
for i in range(7):
    e(f"    s_add_u32 s34, s32, {i*16*2048}")
    e(f"    s_add_u32 m0, s33, {i*1024}")
    e("    s_nop 0")
    e("    buffer_load_dwordx4 v3, s[12:15], s34 offen lds")
e(f"    s_mul_i32 s35, s30, {28*2048}")
e("    s_lshl_b32 s36, s3, 9")
e("    s_add_u32 s35, s35, s36")
HR = 16
for i in range(28):
    if i % 2 == 0 and i > 0:
        e("    s_add_u32 s35, s35, 4096")
    e(f"    buffer_load_dwordx2 v[{HR+2*i}:{HR+2*i+1}], v6, s[24:27], s35 offen offset:{H_OFF+(i%2)*2048}")
for r in range(8, 16):
    e(f"    v_mov_b32 v{r}, 0")
e("    s_waitcnt vmcnt(0)")
e("    s_barrier")
BR = 80
for S in range(14):
    b = BR + 8*(S % 2)
    e(f"    ds_read_b64_tr_b16 v[{b}:{b+1}], v6 offset:{S*2048}")
    e(f"    ds_read_b64_tr_b16 v[{b+2}:{b+3}], v6 offset:{S*2048+1024}")
    e(f"    ds_read_b64_tr_b16 v[{b+4}:{b+5}], v6 offset:{S*2048+512}")
    e(f"    ds_read_b64_tr_b16 v[{b+6}:{b+7}], v6 offset:{S*2048+1536}")
    e("    s_waitcnt lgkmcnt(0)")
    e(f"    v_mfma_f32_16x16x32_bf16 v[8:11], v[{b}:{b+3}], v[{HR+4*S}:{HR+4*S+3}], v[8:11]")
    e(f"    v_mfma_f32_16x16x32_bf16 v[12:15], v[{b+4}:{b+7}], v[{HR+4*S}:{HR+4*S+3}], v[12:15]")
e("    v_and_b32 v3, 15, v2")
e("    v_lshlrev_b32 v3, 12, v3")
e("    v_lshrrev_b32 v4, 4, v2")
e("    v_lshl_add_u32 v3, v4, 4, v3")
e("    s_lshl_b32 s32, s30, 18")
e("    s_lshl_b32 s33, s3, 16")
e("    s_add_u32 s32, s32, s33")
e("    s_lshl_b32 s33, s31, 7")
e("    s_add_u32 s32, s32, s33")
e(f"    s_add_u32 s32, s32, {P_OFF}")
e("    s_nop 7")
e("    buffer_store_dwordx4 v[8:11], v3, s[24:27], s32 offen")
e("    buffer_store_dwordx4 v[12:15], v3, s[24:27], s32 offen offset:64")
e("L_p2_done:")
e("    s_endpgm")

kstart("p3_kernel")
e("    s_cmp_ge_u32 s2, 256")
e("    s_cbranch_scc1 L_p3_done")
e("    s_load_dwordx2 s[4:5], s[0:1], 32    ; out")
e("    s_load_dwordx2 s[10:11], s[0:1], 48  ; ws")
e("    s_lshl_b32 s3, s2, 6")
e("    v_add_u32 v1, s3, v0")
e("    v_lshlrev_b32 v2, 4, v1")
e("    v_lshlrev_b32 v3, 3, v1")
e("    s_waitcnt lgkmcnt(0)")
srd(12, 4, 64*1024*2)
srd(24, 10, 1<<28)
for k in range(8):
    e(f"    s_mov_b32 s30, {P_OFF + k*(1<<18)}")
    e(f"    buffer_load_dwordx4 v[{8+4*k}:{11+4*k}], v2, s[24:27], s30 offen")
for k in range(1, 8):
    e(f"    s_waitcnt vmcnt({7-k})")
    for r in range(4):
        e(f"    v_add_f32 v{8+r}, v{8+r}, v{8+4*k+r}")
e("    v_cvt_pk_bf16_f32 v4, v8, v9")
e("    v_cvt_pk_bf16_f32 v5, v10, v11")
e("    buffer_store_dwordx2 v[4:5], v3, s[12:15], 0 offen")
e("L_p3_done:")
e("    s_endpgm")

e('.section .rodata,"a"')
for name, vg in (("p1_kernel", 208), ("p2_kernel", 96), ("p3_kernel", 40)):
    e(".p2align 6")
    e(f".amdhsa_kernel {name}")
    e(f"  .amdhsa_next_free_vgpr {vg}")
    e("  .amdhsa_next_free_sgpr 64")
    e(f"  .amdhsa_accum_offset {vg}")
    e("  .amdhsa_group_segment_fixed_size 0")
    e("  .amdhsa_kernarg_size 56")
    e("  .amdhsa_user_sgpr_count 2")
    e("  .amdhsa_user_sgpr_kernarg_segment_ptr 1")
    e("  .amdhsa_system_sgpr_workgroup_id_x 1")
    e(".end_amdhsa_kernel")
open(sys.argv[1], 'w').write('\n'.join(out) + '\n')
```

```python
import sys
HDR = open('standalone__geglu_ffn__sampling.s.ref').read().split('\n')[:8]
NAME = "standalone__geglu_ffn__sampling_kernel"
WB = 1024*3584*2
EPOCH_OFF = 0
F_OFF = 4096
H_OFF = 1 << 20
C_OFF = 2 << 20
TS_OFF = 128 << 20
RING = 65536
WD_BASE = RING
LDS_BYTES = WD_BASE + 57344
KX = 0x5bd1e995

def gen(path, ts=False, stH='sc1', stC='sc1', htouch=True, cwait=True, spin=1 << 16, D=3, cpre=False):
    o = []
    def e(s): o.append("    " + s)
    def lab(s): o.append(s + ":")
    def stamp(i):
        if ts: e(f"s_memrealtime s[{64+2*i}:{65+2*i}]")
    o.extend(HDR)
    o.append(f"; @launch grid=(256,1,1) block=(256,1,1) lds={LDS_BYTES}")
    o.append('.amdgcn_target "amdgcn-amd-amdhsa--gfx950"\n.text')
    o.append(f".globl {NAME}\n.p2align 8\n.type {NAME},@function\n{NAME}:")
    stamp(0)
    e("s_cmp_ge_u32 s2, 256")
    e("s_cbranch_scc1 L_done")
    e("s_load_dwordx8 s[4:11], s[0:1], 0")
    e("s_load_dwordx2 s[12:13], s[0:1], 32      ; out")
    e("s_load_dwordx2 s[16:17], s[0:1], 48      ; ws")
    e("v_lshrrev_b32 v1, 6, v0")
    e("v_and_b32 v2, 63, v0                     ; lane")
    e("v_readfirstlane_b32 s3, v1               ; wave")
    e("s_and_b32 s18, s2, 7                     ; xg")
    e("s_lshr_b32 s19, s2, 3                    ; idx")
    e("v_lshrrev_b32 v3, 3, v2                  ; p = l>>3")
    e("v_and_b32 v4, 6, v3")
    e("v_and_b32 v5, 7, v2")
    e("v_xor_b32 v4, v4, v5")
    e("v_lshlrev_b32 v4, 4, v4")
    e("v_lshl_add_u32 v6, v3, 11, v4")
    e("v_lshlrev_b32 v8, 4, v2                  ; v8 = lane*16")
    e("s_cmp_ge_u32 s19, 14")
    e("s_cselect_b32 s20, 1, 0")
    e("s_mul_i32 s21, s20, 14")
    e("s_sub_u32 s23, s19, s21")
    e("s_cmp_ge_u32 s23, 3")
    e("s_addc_u32 s22, s23, 0")
    e("s_cmp_ge_u32 s23, 10")
    e("s_addc_u32 s21, s22, 0                   ; nt")
    e("s_mov_b32 s24, 0")
    e("s_cmp_lt_u32 s19, 28")
    e("s_cbranch_scc1 L_ids")
    e("s_and_b32 s20, s19, 1                    ; mh")
    e("s_and_b32 s21, s19, 2")
    e("s_lshl_b32 s21, s21, 2")
    e("s_add_u32 s21, s21, 3")
    e("s_mul_i32 s24, s20, 7")
    lab("L_ids")
    e("s_waitcnt lgkmcnt(0)")
    e(f"s_load_dword s25, s[16:17], {EPOCH_OFF}   ; epoch")
    def srd(base, ptr, n):
        e(f"s_mov_b32 s{base}, s{ptr}")
        e(f"s_and_b32 s{base+1}, s{ptr+1}, 0xffff")
        e(f"s_mov_b32 s{base+2}, {n}")
        e(f"s_mov_b32 s{base+3}, 0x00020000")
    SX, SG, SU, SD, SO, SW = 28, 32, 36, 40, 44, 52
    srd(SX, 4, 131072); srd(SG, 6, WB); srd(SU, 8, WB); srd(SD, 10, WB)
    srd(SO, 12, 131072); srd(SW, 16, 1 << 28)
    R = lambda b: f"s[{b}:{b+3}]"
    e(f"s_mul_i32 s56, s18, {448*2048}")
    e("s_lshl_b32 s57, s3, 14")
    e("s_add_u32 s56, s56, s57")
    e("s_lshl_b32 s57, s21, 7")
    e("s_add_u32 s56, s56, s57")
    e("s_lshl_b32 s58, s3, 10                   ; w*1024")
    e("s_cmp_ge_u32 s19, 14")
    e("s_cbranch_scc1 L_stream")
    e("v_lshrrev_b32 v3, 4, v2                  ; g = p>>2")
    e("v_bfe_u32 v4, v2, 2, 2                   ; r = p&3")
    e("v_lshl_add_u32 v4, v3, 3, v4")
    e("v_mul_u32_u24 v4, 7168, v4")
    e("v_and_b32 v5, 1, v3")
    e("v_lshlrev_b32 v5, 1, v5")
    e("v_and_b32 v7, 3, v2")
    e("v_xor_b32 v5, v5, v7")
    e("v_lshl_add_u32 v7, v5, 4, v4")
    e("s_lshr_b32 s57, s3, 1")
    e("s_lshl_b32 s57, s57, 5")
    e("s_and_b32 s59, s3, 1")
    e("s_lshl_b32 s59, s59, 2")
    e("s_add_u32 s57, s57, s59")
    e("s_mul_i32 s57, s57, 7168")
    e("s_mul_i32 s59, s18, 896")
    e("s_add_u32 s57, s57, s59")
    e("s_lshl_b32 s59, s19, 6")
    e("s_add_u32 s59, s57, s59                  ; W soffset")
    e("s_lshl_b32 s60, s3, 15")
    e("s_add_u32 s61, s60, 16384")
    e("s_lshl_b32 s62, s3, 11                   ; w*2048")
    def issue(it):
        base = (it % 4) * 16384
        e(f"s_add_u32 m0, s62, {base}")
        e("s_nop 0")
        e(f"buffer_load_dwordx4 v6, {R(SX)}, s60 offen lds")
        e(f"s_add_u32 m0, s62, {base + 1024}")
        e("s_add_u32 s60, s60, 128")
        e(f"buffer_load_dwordx4 v6, {R(SX)}, s61 offen lds")
        e(f"s_add_u32 m0, s58, {base + 8192}")
        e("s_add_u32 s61, s61, 128")
        e(f"buffer_load_dwordx4 v7, {R(SG)}, s59 offen nt lds")
        e(f"s_add_u32 m0, s58, {base + 12288}")
        e("s_nop 0")
        e(f"buffer_load_dwordx4 v7, {R(SU)}, s59 offen nt lds")
        e(f"s_add_u32 s59, s59, {64*7168}")
    def wd_static(S):
        e(f"s_add_u32 m0, s58, {WD_BASE + S*4096}")
        e(f"s_add_u32 s57, s56, {S*32*2048}")
        e(f"buffer_load_dwordx4 v6, {R(SD)}, s57 offen nt lds")
    for it in range(D):
        issue(it)
        if it < D-1: e("s_barrier")
    stamp(1)
    e("v_and_b32 v9, 15, v2")
    e("v_and_b32 v11, 6, v9")
    e("v_xor_b32 v11, v11, v3")
    e("v_lshlrev_b32 v11, 4, v11")
    e("v_lshl_add_u32 v11, v9, 7, v11")
    e("v_add_u32 v11, s62, v11")
    e("v_xor_b32 v12, 64, v11")
    e("v_lshrrev_b32 v13, 2, v2")
    e("v_lshlrev_b32 v13, 6, v13")
    e("v_and_b32 v14, 3, v2")
    e("v_lshl_add_u32 v13, v14, 3, v13")
    e("v_and_b32 v14, 1, v3")
    e("v_lshl_add_u32 v13, v14, 5, v13          ; t=0")
    e("v_xor_b32 v14, 32, v13                   ; t=1")
    ACC = 16
    XF = 32
    WF = 40
    for r in range(16): e(f"v_mov_b32 v{ACC+r}, 0")
    e("s_waitcnt lgkmcnt(0)")
    wd_next = [0]
    pend = [4]*D
    for it in range(16):
        base = (it % 4) * 16384
        pend.pop(0)
        e(f"s_waitcnt vmcnt({sum(pend)})")
        e("s_barrier")
        for ks in range(2):
            e(f"ds_read_b128 v[{XF+4*ks}:{XF+4*ks+3}], v{11+ks} offset:{base}")
            for mat in range(2):
                for t in range(2):
                    for h in range(2):
                        r = WF + ((ks*2+mat)*2+t)*4 + h*2
                        e(f"ds_read_b64_tr_b16 v[{r}:{r+1}], v{13+t} offset:{base + 8192 + mat*4096 + (ks*2+h)*1024}")
            if ks == 0:
                if it + D < 16:
                    issue(it + D); pend.append(4)
                else:
                    n = min(5, 14 - wd_next[0])
                    for S in range(wd_next[0], wd_next[0] + n): wd_static(S)
                    wd_next[0] += n; pend.append(n)
        for ks in range(2):
            for mat in range(2):
                rem = (1-ks)*9 + (1-mat)*4
                e(f"s_waitcnt lgkmcnt({rem})")
                for t in range(2):
                    a = ACC + t*8 + mat*4
                    wf = WF + ((ks*2+mat)*2+t)*4
                    e(f"v_mfma_f32_16x16x32_bf16 v[{a}:{a+3}], v[{wf}:{wf+3}], v[{XF+4*ks}:{XF+4*ks+3}], v[{a}:{a+3}]")
    assert wd_next[0] == 14
    stamp(2)
    e(f"s_xor_b32 s26, s25, {KX}                ; tag32")
    e("s_lshl_b32 s57, s18, 2")
    e("s_add_u32 s57, s57, s3")
    e("s_mul_i32 s57, s57, 14")
    e("s_add_u32 s57, s57, s19")
    e("s_lshl_b32 s57, s57, 11")
    e(f"s_add_u32 s57, s57, {H_OFF}")
    e("s_mov_b32 s59, 0xbdd2d3e8")
    T = 40
    HG = 64
    e(f"v_mov_b32 v{T+16}, 0xc0135761")
    for k in (0, 1, 6, 7): e(f"v_mov_b32 v{HG+k}, s26")
    for t in range(2):
        for mat in range(2):
            a = ACC + t*8 + mat*4
            e(f"v_cvt_pk_bf16_f32 v{T+t*4+mat*2}, v{a}, v{a+1}")
            e(f"v_cvt_pk_bf16_f32 v{T+t*4+mat*2+1}, v{a+2}, v{a+3}")
    for k in range(8):
        e(f"v_lshlrev_b32 v{ACC+2*k}, 16, v{T+k}")
        e(f"v_and_b32 v{ACC+2*k+1}, 0xffff0000, v{T+k}")
    G = [ACC + t*8 + r for t in range(2) for r in range(4)]
    U = [g + 4 for g in G]
    for i in range(8): e(f"v_mul_f32 v{T+i}, v{G[i]}, v{G[i]}")
    for i in range(8): e(f"v_fma_f32 v{T+i}, v{T+i}, s59, v{T+16}")
    for i in range(8): e(f"v_mul_f32 v{T+i}, v{T+i}, v{G[i]}")
    for i in range(8): e(f"v_exp_f32 v{T+i}, v{T+i}")
    for i in range(8): e(f"v_add_f32 v{T+i}, 1.0, v{T+i}")
    for i in range(8): e(f"v_rcp_f32 v{T+i}, v{T+i}")
    for i in range(8): e(f"v_mul_f32 v{T+i}, v{T+i}, v{G[i]}")
    for k in range(4): e(f"v_cvt_pk_bf16_f32 v{T+8+k}, v{T+2*k}, v{T+2*k+1}")
    for k in range(4):
        e(f"v_lshlrev_b32 v{T+2*k}, 16, v{T+8+k}")
        e(f"v_and_b32 v{T+2*k+1}, 0xffff0000, v{T+8+k}")
    for i in range(8): e(f"v_mul_f32 v{T+i}, v{T+i}, v{U[i]}")
    for k in range(4): e(f"v_cvt_pk_bf16_f32 v{HG+2+k}, v{T+2*k}, v{T+2*k+1}")
    e(f"buffer_store_dwordx4 v[{HG}:{HG+3}], v8, {R(SW)}, s57 offen {stH}")
    e(f"buffer_store_dwordx4 v[{HG+4}:{HG+7}], v8, {R(SW)}, s57 offen offset:1024 {stH}")
    stamp(3)
    e("s_waitcnt vmcnt(2)")
    e("s_branch L_phase2")
    lab("L_stream")
    e("s_cmp_lg_u32 s3, 0")
    e("s_cbranch_scc1 L_nopf")
    e("v_lshlrev_b32 v7, 7, v2                  ; lane*128")
    e("s_and_b32 s57, s23, 15")
    e("s_lshl_b32 s57, s57, 13")
    e(f"buffer_load_dword v16, v7, {R(SX)}, s57 offen     ; x touch")
    e("v_mul_u32_u24 v4, 9363, v2")
    e("v_lshrrev_b32 v4, 16, v4")
    e("v_mul_u32_u24 v5, 7, v4")
    e("v_sub_u32 v5, v2, v5")
    e("v_min_u32 v4, 8, v4")
    e("v_mul_u32_u24 v4, 7168, v4")
    e("v_lshl_add_u32 v4, v5, 7, v4")
    e("s_mul_i32 s59, s18, 896")
    e(f"s_mul_i32 s60, s23, {9*7168}")
    e("s_add_u32 s59, s59, s60")
    for t in range(7):
        if t == 6:
            e("s_cmp_ge_u32 s23, 6")
            e("s_cbranch_scc1 L_nopf")
        e(f"buffer_load_dword v{18+2*t}, v4, {R(SG)}, s59 offen nt")
        e(f"buffer_load_dword v{19+2*t}, v4, {R(SU)}, s59 offen nt")
        e(f"s_add_u32 s59, s59, {18*9*7168}")
        if t == 0 and htouch:
            e(f"s_mul_i32 s60, s18, {112*1024}")
            e("s_min_u32 s61, s23, 13")
            e("s_lshl_b32 s61, s61, 13")
            e("s_add_u32 s60, s60, s61")
            e(f"s_add_u32 s60, s60, {H_OFF}")
            e(f"buffer_load_dword v17, v7, {R(SW)}, s60 offen sc1")
    lab("L_nopf")
    e("s_waitcnt lgkmcnt(0)")
    e("s_barrier")
    e(f"s_xor_b32 s26, s25, {KX}")
    e("s_cmp_lg_u32 s3, 0")
    e("s_cbranch_scc1 L_noflag")
    e("v_mov_b32 v4, s26")
    e("v_mov_b32 v5, 0")
    e("s_lshl_b32 s57, s2, 4")
    e(f"s_add_u32 s57, s57, {F_OFF}")
    e("s_mov_b64 exec, 1")
    e(f"buffer_store_dword v4, v5, {R(SW)}, s57 offen sc1")
    e("s_mov_b64 exec, -1")
    lab("L_noflag")
    stamp(1)
    e("s_lshl_b32 s59, s24, 12")
    e("s_add_u32 s59, s59, s58")
    e(f"s_add_u32 s59, s59, {WD_BASE}")
    e("s_lshl_b32 s57, s24, 16")
    e("s_add_u32 s57, s57, s56")
    for S in range(14):
        e("s_mov_b32 m0, s59")
        e("s_add_u32 s59, s59, 4096")
        e(f"buffer_load_dwordx4 v6, {R(SD)}, s57 offen nt lds")
        e("s_add_u32 s57, s57, 65536")
        if S == 6:
            e("s_lshl_b32 s60, s24, 13")
            e("s_sub_u32 s59, s59, s60")
            e("s_lshl_b32 s60, s24, 17")
            e("s_sub_u32 s57, s57, s60")
    e("s_waitcnt vmcnt(0)")
    lab("L_phase2")
    HR = 192
    DF = 80
    A2 = 16
    e("s_barrier")
    stamp(4)
    e("s_and_b32 s60, s3, 1                     ; mt2")
    e("s_lshr_b32 s61, s3, 1                    ; kh")
    e("s_lshl_b32 s57, s18, 1")
    e("s_add_u32 s57, s57, s20")
    e("s_lshl_b32 s57, s57, 1")
    e("s_add_u32 s57, s57, s60")
    e("s_lshl_b32 s57, s57, 1")
    e("s_add_u32 s57, s57, s61")
    e(f"s_mul_i32 s57, s57, {14*1024}")
    e(f"s_add_u32 s57, s57, {H_OFF}")
    e("s_add_u32 s59, s57, 4096")
    e("s_add_u32 s91, s57, 8192")
    e("s_add_u32 s92, s57, 12288")
    def pollH():
        for u in range(14):
            sreg = ("s57", "s59", "s91", "s92")[u // 4]
            e(f"buffer_load_dwordx4 v[{HR+4*u}:{HR+4*u+3}], v8, {R(SW)}, {sreg} offen offset:{(u%4)*1024} sc1")
    pollH()
    e("v_bfe_u32 v13, v2, 3, 2")
    e("s_lshl_b32 s62, s61, 1")
    e("v_xor_b32 v13, s62, v13")
    e("v_lshrrev_b32 v14, 2, v2")
    e("v_lshlrev_b32 v14, 7, v14")
    e("v_and_b32 v15, 3, v2")
    e("v_lshl_add_u32 v14, v15, 3, v14")
    e("s_mul_i32 s62, s61, 28672")
    e(f"s_add_u32 s62, s62, {WD_BASE}")
    e("v_add_u32 v14, s62, v14")
    for n4 in range(4):
        e(f"v_xor_b32 v{32+n4}, {n4}, v13")
        e(f"v_lshl_add_u32 v{32+n4}, v{32+n4}, 5, v14")
    for S in range(7):
        for n4 in range(4):
            for h in range(2):
                r = DF + (S*4+n4)*4 + h*2
                e(f"ds_read_b64_tr_b16 v[{r}:{r+1}], v{32+n4} offset:{S*4096 + h*2048}")
        e("s_waitcnt lgkmcnt(8)")
    for r in range(16): e(f"v_mov_b32 v{A2+r}, 0")
    for j in range(4):
        e(f"s_bfe_u32 s{48+j}, s26, {(8<<16) | (8*j)}")
    e("v_mov_b32 v1, 0xff")
    e("s_mov_b32 s90, 0")
    e("s_waitcnt vmcnt(0)")
    e("s_branch L_chkH")
    lab("L_pollH")
    e("s_add_u32 s90, s90, 1")
    e(f"s_cmp_ge_u32 s90, {spin}")
    e("s_cbranch_scc1 L_done")
    pollH()
    e("s_waitcnt vmcnt(0)")
    lab("L_chkH")
    first = True
    for u in range(14):
        t0 = HR + 4*u + (0 if u % 2 == 0 else 2)
        for t in (t0, t0+1):
            if first:
                e(f"v_xor_b32 v3, s26, v{t}"); first = False
            else:
                e(f"v_bitop3_b32 v3, v{t}, s26, v3 bitop3:0xbe")
    e("v_cmp_ne_u32 vcc, 0, v3")
    e("s_cbranch_vccnz L_pollH")
    stamp(5)
    e("s_waitcnt lgkmcnt(0)")
    for S in range(7):
        hf = HR + 8*S + 2
        for n4 in (2, 3, 0, 1):
            d = DF + (S*4+n4)*4
            a = A2 + 4*n4
            e(f"v_mfma_f32_16x16x32_bf16 v[{a}:{a+3}], v[{d}:{d+3}], v[{hf}:{hf+3}], v[{a}:{a+3}]")
    e("s_lshl_b32 s62, s3, 11")
    e("v_add_u32 v9, s62, v8")
    e("v_xor_b32 v10, 4096, v9")
    e("v_bfe_u32 v3, v2, 2, 2")
    e("v_lshlrev_b32 v3, 13, v3")
    e("v_lshrrev_b32 v4, 4, v2")
    e("v_lshl_add_u32 v3, v4, 6, v3")
    e("v_and_b32 v4, 3, v2")
    e("v_lshl_add_u32 v3, v4, 4, v3")
    e(f"ds_write_b128 v9, v[{A2+8}:{A2+11}]")
    e(f"ds_write_b128 v9, v[{A2+12}:{A2+15}] offset:1024")
    e("s_lshl_b32 s57, s21, 1")
    e("s_add_u32 s57, s57, s20")
    e("s_lshl_b32 s57, s57, 16")
    e(f"s_add_u32 s57, s57, {C_OFF}")
    e("s_lshl_b32 s59, s60, 15                  ; mt2*4*8192")
    e("s_add_u32 s59, s59, s57")
    e("s_lshl_b32 s91, s18, 10                  ; src*1024")
    e("s_add_u32 s59, s59, s91")
    e("s_lshl_b32 s91, s61, 9                   ; n4 = 2kh + n'")
    e("s_add_u32 s59, s59, s91")
    e("s_lshl_b32 s91, s18, 13")
    e("s_add_u32 s57, s57, s91")
    e("s_lshl_b32 s91, s3, 8")
    e("s_add_u32 s57, s57, s91                  ; inbox + w*256")
    e("v_lshlrev_b32 v5, 2, v2")
    e("v_lshlrev_b32 v4, 3, v4")
    e("v_lshrrev_b32_e64 v4, v4, s26")
    e("s_waitcnt lgkmcnt(0)")
    e("s_barrier")
    e(f"ds_read_b128 v[{A2+8}:{A2+11}], v10")
    e(f"ds_read_b128 v[{A2+12}:{A2+15}], v10 offset:1024")
    for n in range(2):
        e(f"s_waitcnt lgkmcnt({1-n})")
        a = A2 + 4*n
        for j in range(4): e(f"v_add_f32 v{a+j}, v{a+j}, v{a+8+j}")
        for j in range(4): e(f"v_bfi_b32 v{a+j}, v1, s{48+j}, v{a+j}")
        e(f"buffer_store_dwordx4 v[{a}:{a+3}], v3, {R(SW)}, s59 offen offset:{n*256} {stC}")
    stamp(6)
    e("s_add_u32 s59, s57, 4096")
    CR = 40
    e("v_bfe_u32 v9, v2, 2, 2                   ; mm")
    e("v_lshlrev_b32 v9, 11, v9")
    e("v_lshrrev_b32 v10, 4, v2")
    e("v_lshl_add_u32 v9, v10, 3, v9")
    e("v_and_b32 v10, 3, v2")
    e("v_lshl_add_u32 v9, v10, 1, v9")
    e("s_lshl_b32 s91, s20, 3")
    e("s_add_u32 s91, s91, s18")
    e("s_lshl_b32 s91, s91, 13")
    e("s_lshl_b32 s92, s21, 7")
    e("s_add_u32 s91, s91, s92")
    e("s_lshl_b32 s92, s3, 5")
    e("s_add_u32 s91, s91, s92")
    e("s_mov_b32 s90, 0")
    if cwait: e("s_waitcnt vmcnt(0)")
    stamp(7)
    lab("L_pollC")
    e("s_add_u32 s90, s90, 1")
    e(f"s_cmp_ge_u32 s90, {spin}")
    e("s_cbranch_scc1 L_done")
    for s_ in range(8):
        sreg = ("s57", "s59")[s_ // 4]
        e(f"buffer_load_dword v{CR+s_}, v5, {R(SW)}, {sreg} offen offset:{(s_%4)*1024} sc1")
    e("s_waitcnt vmcnt(0)")
    e(f"v_xor_b32 v3, v4, v{CR}")
    for s_ in range(1, 8):
        e(f"v_bitop3_b32 v3, v{CR+s_}, v4, v3 bitop3:0xbe")
    e("v_and_b32 v3, 0xff, v3")
    e("v_cmp_ne_u32 vcc, 0, v3")
    e("s_cbranch_vccnz L_pollC")
    stamp(8)
    st = 1
    while st < 8:
        for s_ in range(0, 8, 2*st):
            e(f"v_add_f32 v{CR+s_}, v{CR+s_}, v{CR+s_+st}")
        st *= 2
    e(f"v_cvt_pk_bf16_f32 v{CR}, v{CR}, v{CR}")
    e(f"buffer_store_short v{CR}, v9, {R(SO)}, s91 offen")
    e("s_or_b32 s57, s2, s3")
    e("s_cmp_lg_u32 s57, 0")
    e("s_cbranch_scc1 L_fin")
    e("s_mov_b32 s90, 0")
    e(f"s_mov_b32 s57, {F_OFF + 112*16}")
    e("v_min_u32 v10, 15, v2")
    e("v_lshlrev_b32 v10, 4, v10")
    lab("L_pollE")
    e("s_add_u32 s90, s90, 1")
    e(f"s_cmp_ge_u32 s90, {spin}")
    e("s_cbranch_scc1 L_done")
    e(f"buffer_load_dword v16, v8, {R(SW)}, s57 offen sc1")
    e(f"buffer_load_dword v17, v8, {R(SW)}, s57 offen offset:1024 sc1")
    e(f"buffer_load_dword v18, v10, {R(SW)}, s57 offen offset:2048 sc1")
    e("s_waitcnt vmcnt(0)")
    e("v_xor_b32 v3, s26, v16")
    e("v_bitop3_b32 v3, v17, s26, v3 bitop3:0xbe")
    e("v_bitop3_b32 v3, v18, s26, v3 bitop3:0xbe")
    e("v_cmp_ne_u32 vcc, 0, v3")
    e("s_cbranch_vccnz L_pollE")
    e("s_add_u32 s57, s25, 0x01010101")
    e("v_mov_b32 v3, s57")
    e("v_mov_b32 v4, 0")
    e("s_mov_b64 exec, 1")
    e(f"buffer_store_dword v3, v4, {R(SW)}, 0 offen offset:{EPOCH_OFF} sc1")
    e("s_mov_b64 exec, -1")
    lab("L_fin")
    if ts:
        e("s_waitcnt vmcnt(0)")
        stamp(9)
        e("s_waitcnt lgkmcnt(0)")
        e("s_cmp_lg_u32 s3, 0")
        e("s_cbranch_scc1 L_done")
        e("s_lshl_b32 s57, s2, 7")
        e(f"s_add_u32 s57, s57, {TS_OFF}")
        for r in range(20): e(f"v_mov_b32 v{16+r}, s{64+r}")
        e("v_mov_b32 v3, 0")
        e("s_mov_b64 exec, 1")
        for q in range(5):
            e(f"buffer_store_dwordx4 v[{16+4*q}:{19+4*q}], v3, {R(SW)}, s57 offen offset:{16*q}")
    lab("L_done")
    e("s_endpgm")
    o.append('.section .rodata,"a"\n.p2align 6')
    o.append(f".amdhsa_kernel {NAME}")
    o.append("  .amdhsa_next_free_vgpr 248\n  .amdhsa_next_free_sgpr 96\n  .amdhsa_accum_offset 248")
    o.append("  .amdhsa_group_segment_fixed_size 0\n  .amdhsa_kernarg_size 56\n  .amdhsa_user_sgpr_count 2")
    o.append("  .amdhsa_user_sgpr_kernarg_segment_ptr 1\n  .amdhsa_system_sgpr_workgroup_id_x 1\n.end_amdhsa_kernel")
    open(path, 'w').write('\n'.join(o) + '\n')

if __name__ == "__main__":
    gen('v2.s')
    gen('v2_ts.s', ts=True)
    gen('v2_ts_nht.s', ts=True, htouch=False)
    gen('v2_ts_ncw.s', ts=True, cwait=False)
```

```python
import sys
HDR = open('standalone__geglu_ffn__sampling.s.ref').read().split('\n')[:8]
NAME = "standalone__geglu_ffn__sampling_kernel"
WB = 1024*3584*2
EPOCH_OFF = 0
F_OFF = 4096
H_OFF = 1 << 20
C_OFF = 2 << 20
TS_OFF = 128 << 20
RING = 65536
WD_BASE = RING
LDS_BYTES = WD_BASE + 57344
KX = 0x5bd1e995

def gen(path, ts=False, stH='sc1', stC='sc1', htouch=True, cwait=True, spin=1 << 16, D=3, cpre=False, dbg=None):
    o = []
    def e(s): o.append("    " + s)
    def lab(s): o.append(s + ":")
    def stamp(i):
        if ts: e(f"s_memrealtime s[{64+2*i}:{65+2*i}]")
    o.extend(HDR)
    o.append(f"; @launch grid=(256,1,1) block=(256,1,1) lds={LDS_BYTES}")
    o.append('.amdgcn_target "amdgcn-amd-amdhsa--gfx950"\n.text')
    o.append(f".globl {NAME}\n.p2align 8\n.type {NAME},@function\n{NAME}:")
    stamp(0)
    e("s_cmp_ge_u32 s2, 256")
    e("s_cbranch_scc1 L_done")
    e("s_load_dwordx8 s[4:11], s[0:1], 0")
    e("s_load_dwordx2 s[12:13], s[0:1], 32      ; out")
    e("s_load_dwordx2 s[16:17], s[0:1], 48      ; ws")
    e("v_lshrrev_b32 v1, 6, v0")
    e("v_and_b32 v2, 63, v0                     ; lane")
    e("v_readfirstlane_b32 s3, v1               ; wave")
    e("s_and_b32 s18, s2, 7                     ; xg")
    e("s_lshr_b32 s19, s2, 3                    ; idx")
    e("v_lshrrev_b32 v3, 3, v2                  ; p = l>>3")
    e("v_and_b32 v4, 6, v3")
    e("v_and_b32 v5, 7, v2")
    e("v_xor_b32 v4, v4, v5")
    e("v_lshlrev_b32 v4, 4, v4")
    e("v_lshl_add_u32 v6, v3, 11, v4")
    e("v_lshlrev_b32 v8, 4, v2                  ; v8 = lane*16")
    e("s_cmp_ge_u32 s19, 14")
    e("s_cselect_b32 s20, 1, 0")
    e("s_mul_i32 s21, s20, 14")
    e("s_sub_u32 s23, s19, s21")
    e("s_cmp_ge_u32 s23, 3")
    e("s_addc_u32 s22, s23, 0")
    e("s_cmp_ge_u32 s23, 10")
    e("s_addc_u32 s21, s22, 0                   ; nt")
    e("s_mov_b32 s24, 0")
    e("s_cmp_lt_u32 s19, 28")
    e("s_cbranch_scc1 L_ids")
    e("s_and_b32 s20, s19, 1                    ; mh")
    e("s_and_b32 s21, s19, 2")
    e("s_lshl_b32 s21, s21, 2")
    e("s_add_u32 s21, s21, 3")
    e("s_mul_i32 s24, s20, 7")
    lab("L_ids")
    e("s_waitcnt lgkmcnt(0)")
    e(f"s_load_dword s25, s[16:17], {EPOCH_OFF}   ; epoch")
    def srd(base, ptr, n):
        e(f"s_mov_b32 s{base}, s{ptr}")
        e(f"s_and_b32 s{base+1}, s{ptr+1}, 0xffff")
        e(f"s_mov_b32 s{base+2}, {n}")
        e(f"s_mov_b32 s{base+3}, 0x00020000")
    SX, SG, SU, SD, SO, SW = 28, 32, 36, 40, 44, 52
    srd(SX, 4, 131072); srd(SG, 6, WB); srd(SU, 8, WB); srd(SD, 10, WB)
    srd(SO, 12, 131072); srd(SW, 16, 1 << 28)
    R = lambda b: f"s[{b}:{b+3}]"
    e(f"s_mul_i32 s56, s18, {448*2048}")
    e("s_lshl_b32 s57, s3, 14")
    e("s_add_u32 s56, s56, s57")
    e("s_lshl_b32 s57, s21, 7")
    e("s_add_u32 s56, s56, s57")
    e("s_lshl_b32 s58, s3, 10                   ; w*1024")
    e("s_cmp_ge_u32 s19, 14")
    e("s_cbranch_scc1 L_stream")
    e("v_lshrrev_b32 v3, 4, v2                  ; g = p>>2")
    e("v_bfe_u32 v4, v2, 2, 2                   ; r = p&3")
    e("v_lshl_add_u32 v4, v3, 3, v4")
    e("v_mul_u32_u24 v4, 7168, v4")
    e("v_and_b32 v5, 1, v3")
    e("v_lshlrev_b32 v5, 1, v5")
    e("v_and_b32 v7, 3, v2")
    e("v_xor_b32 v5, v5, v7")
    e("v_lshl_add_u32 v7, v5, 4, v4")
    e("s_lshr_b32 s57, s3, 1")
    e("s_lshl_b32 s57, s57, 5")
    e("s_and_b32 s59, s3, 1")
    e("s_lshl_b32 s59, s59, 2")
    e("s_add_u32 s57, s57, s59")
    e("s_mul_i32 s57, s57, 7168")
    e("s_mul_i32 s59, s18, 896")
    e("s_add_u32 s57, s57, s59")
    e("s_lshl_b32 s59, s19, 6")
    e("s_add_u32 s59, s57, s59                  ; W soffset")
    e("s_lshl_b32 s60, s3, 15")
    e("s_add_u32 s61, s60, 16384")
    e("s_lshl_b32 s62, s3, 11                   ; w*2048")
    def issue(it):
        base = (it % 4) * 16384
        e(f"s_add_u32 m0, s62, {base}")
        e("s_nop 0")
        e(f"buffer_load_dwordx4 v6, {R(SX)}, s60 offen lds")
        e(f"s_add_u32 m0, s62, {base + 1024}")
        e("s_add_u32 s60, s60, 128")
        e(f"buffer_load_dwordx4 v6, {R(SX)}, s61 offen lds")
        e(f"s_add_u32 m0, s58, {base + 8192}")
        e("s_add_u32 s61, s61, 128")
        e(f"buffer_load_dwordx4 v7, {R(SG)}, s59 offen nt lds")
        e(f"s_add_u32 m0, s58, {base + 12288}")
        e("s_nop 0")
        e(f"buffer_load_dwordx4 v7, {R(SU)}, s59 offen nt lds")
        e(f"s_add_u32 s59, s59, {64*7168}")
    def wd_static(S):
        e(f"s_add_u32 m0, s58, {WD_BASE + S*4096}")
        e(f"s_add_u32 s57, s56, {S*32*2048}")
        e(f"buffer_load_dwordx4 v6, {R(SD)}, s57 offen nt lds")
    for it in range(D):
        issue(it)
        if it < D-1: e("s_barrier")
    stamp(1)
    e("v_and_b32 v9, 15, v2")
    e("v_and_b32 v11, 6, v9")
    e("v_xor_b32 v11, v11, v3")
    e("v_lshlrev_b32 v11, 4, v11")
    e("v_lshl_add_u32 v11, v9, 7, v11")
    e("v_add_u32 v11, s62, v11")
    e("v_xor_b32 v12, 64, v11")
    e("v_lshrrev_b32 v13, 2, v2")
    e("v_lshlrev_b32 v13, 6, v13")
    e("v_and_b32 v14, 3, v2")
    e("v_lshl_add_u32 v13, v14, 3, v13")
    e("v_and_b32 v14, 1, v3")
    e("v_lshl_add_u32 v13, v14, 5, v13          ; t=0")
    e("v_xor_b32 v14, 32, v13                   ; t=1")
    ACC = 16
    XF = 32
    WF = 40
    for r in range(16): e(f"v_mov_b32 v{ACC+r}, 0")
    e("s_waitcnt lgkmcnt(0)")
    wd_next = [0]
    pend = [4]*D
    for it in range(16):
        base = (it % 4) * 16384
        pend.pop(0)
        e(f"s_waitcnt vmcnt({sum(pend)})")
        e("s_barrier")
        for ks in range(2):
            e(f"ds_read_b128 v[{XF+4*ks}:{XF+4*ks+3}], v{11+ks} offset:{base}")
            for mat in range(2):
                for t in range(2):
                    for h in range(2):
                        r = WF + ((ks*2+mat)*2+t)*4 + h*2
                        e(f"ds_read_b64_tr_b16 v[{r}:{r+1}], v{13+t} offset:{base + 8192 + mat*4096 + (ks*2+h)*1024}")
            if ks == 0:
                if it + D < 16:
                    issue(it + D); pend.append(4)
                else:
                    n = min(5, 14 - wd_next[0])
                    for S in range(wd_next[0], wd_next[0] + n): wd_static(S)
                    wd_next[0] += n; pend.append(n)
        for ks in range(2):
            for mat in range(2):
                rem = (1-ks)*9 + (1-mat)*4
                e(f"s_waitcnt lgkmcnt({rem})")
                for t in range(2):
                    a = ACC + t*8 + mat*4
                    wf = WF + ((ks*2+mat)*2+t)*4
                    e(f"v_mfma_f32_16x16x32_bf16 v[{a}:{a+3}], v[{wf}:{wf+3}], v[{XF+4*ks}:{XF+4*ks+3}], v[{a}:{a+3}]")
    assert wd_next[0] == 14
    stamp(2)
    e(f"s_xor_b32 s26, s25, {KX}                ; tag32")
    e("s_lshl_b32 s57, s18, 2")
    e("s_add_u32 s57, s57, s3")
    e("s_mul_i32 s57, s57, 14")
    e("s_add_u32 s57, s57, s19")
    e("s_lshl_b32 s57, s57, 11")
    e(f"s_add_u32 s57, s57, {H_OFF}")
    e("s_mov_b32 s59, 0xbdd2d3e8")
    T = 40
    HG = 64
    e(f"v_mov_b32 v{T+16}, 0xc0135761")
    for k in (0, 1, 6, 7): e(f"v_mov_b32 v{HG+k}, s26")
    for t in range(2):
        for mat in range(2):
            a = ACC + t*8 + mat*4
            e(f"v_cvt_pk_bf16_f32 v{T+t*4+mat*2}, v{a}, v{a+1}")
            e(f"v_cvt_pk_bf16_f32 v{T+t*4+mat*2+1}, v{a+2}, v{a+3}")
    for k in range(8):
        e(f"v_lshlrev_b32 v{ACC+2*k}, 16, v{T+k}")
        e(f"v_and_b32 v{ACC+2*k+1}, 0xffff0000, v{T+k}")
    G = [ACC + t*8 + r for t in range(2) for r in range(4)]
    U = [g + 4 for g in G]
    for i in range(8): e(f"v_mul_f32 v{T+i}, v{G[i]}, v{G[i]}")
    for i in range(8): e(f"v_fma_f32 v{T+i}, v{T+i}, s59, v{T+16}")
    for i in range(8): e(f"v_mul_f32 v{T+i}, v{T+i}, v{G[i]}")
    for i in range(8): e(f"v_exp_f32 v{T+i}, v{T+i}")
    for i in range(8): e(f"v_add_f32 v{T+i}, 1.0, v{T+i}")
    for i in range(8): e(f"v_rcp_f32 v{T+i}, v{T+i}")
    for i in range(8): e(f"v_mul_f32 v{T+i}, v{T+i}, v{G[i]}")
    for k in range(4): e(f"v_cvt_pk_bf16_f32 v{T+8+k}, v{T+2*k}, v{T+2*k+1}")
    for k in range(4):
        e(f"v_lshlrev_b32 v{T+2*k}, 16, v{T+8+k}")
        e(f"v_and_b32 v{T+2*k+1}, 0xffff0000, v{T+8+k}")
    for i in range(8): e(f"v_mul_f32 v{T+i}, v{T+i}, v{U[i]}")
    for k in range(4): e(f"v_cvt_pk_bf16_f32 v{HG+2+k}, v{T+2*k}, v{T+2*k+1}")
    e(f"buffer_store_dwordx4 v[{HG}:{HG+3}], v8, {R(SW)}, s57 offen {stH}")
    e(f"buffer_store_dwordx4 v[{HG+4}:{HG+7}], v8, {R(SW)}, s57 offen offset:1024 {stH}")
    stamp(3)
    e("s_waitcnt vmcnt(2)")
    e("s_branch L_phase2")
    lab("L_stream")
    e("s_cmp_lg_u32 s3, 0")
    e("s_cbranch_scc1 L_nopf")
    e("v_lshlrev_b32 v7, 7, v2                  ; lane*128")
    e("s_and_b32 s57, s23, 15")
    e("s_lshl_b32 s57, s57, 13")
    e(f"buffer_load_dword v16, v7, {R(SX)}, s57 offen     ; x touch")
    e("v_mul_u32_u24 v4, 9363, v2")
    e("v_lshrrev_b32 v4, 16, v4")
    e("v_mul_u32_u24 v5, 7, v4")
    e("v_sub_u32 v5, v2, v5")
    e("v_min_u32 v4, 8, v4")
    e("v_mul_u32_u24 v4, 7168, v4")
    e("v_lshl_add_u32 v4, v5, 7, v4")
    e("s_mul_i32 s59, s18, 896")
    e(f"s_mul_i32 s60, s23, {9*7168}")
    e("s_add_u32 s59, s59, s60")
    for t in range(7):
        if t == 6:
            e("s_cmp_ge_u32 s23, 6")
            e("s_cbranch_scc1 L_nopf")
        e(f"buffer_load_dword v{18+2*t}, v4, {R(SG)}, s59 offen nt")
        e(f"buffer_load_dword v{19+2*t}, v4, {R(SU)}, s59 offen nt")
        e(f"s_add_u32 s59, s59, {18*9*7168}")
        if t == 0 and htouch:
            e(f"s_mul_i32 s60, s18, {112*1024}")
            e("s_min_u32 s61, s23, 13")
            e("s_lshl_b32 s61, s61, 13")
            e("s_add_u32 s60, s60, s61")
            e(f"s_add_u32 s60, s60, {H_OFF}")
            e(f"buffer_load_dword v17, v7, {R(SW)}, s60 offen sc1")
    lab("L_nopf")
    e("s_waitcnt lgkmcnt(0)")
    e("s_barrier")
    e(f"s_xor_b32 s26, s25, {KX}")
    e("s_cmp_lg_u32 s3, 0")
    e("s_cbranch_scc1 L_noflag")
    e("v_mov_b32 v4, s26")
    e("v_mov_b32 v5, 0")
    e("s_lshl_b32 s57, s2, 4")
    e(f"s_add_u32 s57, s57, {F_OFF}")
    e("s_mov_b64 exec, 1")
    e(f"buffer_store_dword v4, v5, {R(SW)}, s57 offen sc1")
    e("s_mov_b64 exec, -1")
    lab("L_noflag")
    stamp(1)
    e("s_lshl_b32 s59, s24, 12")
    e("s_add_u32 s59, s59, s58")
    e(f"s_add_u32 s59, s59, {WD_BASE}")
    e("s_lshl_b32 s57, s24, 16")
    e("s_add_u32 s57, s57, s56")
    for S in range(14):
        e("s_mov_b32 m0, s59")
        e("s_add_u32 s59, s59, 4096")
        e(f"buffer_load_dwordx4 v6, {R(SD)}, s57 offen nt lds")
        e("s_add_u32 s57, s57, 65536")
        if S == 6:
            e("s_lshl_b32 s60, s24, 13")
            e("s_sub_u32 s59, s59, s60")
            e("s_lshl_b32 s60, s24, 17")
            e("s_sub_u32 s57, s57, s60")
    e("s_waitcnt vmcnt(0)")
    lab("L_phase2")
    HR = 192
    DF = 80
    A2 = 16
    e("s_barrier")
    stamp(4)
    e("s_and_b32 s60, s3, 1                     ; mt2")
    e("s_lshr_b32 s61, s3, 1                    ; kh")
    e("s_lshl_b32 s57, s18, 1")
    e("s_add_u32 s57, s57, s20")
    e("s_lshl_b32 s57, s57, 1")
    e("s_add_u32 s57, s57, s60")
    e("s_lshl_b32 s57, s57, 1")
    e("s_add_u32 s57, s57, s61")
    e(f"s_mul_i32 s57, s57, {14*1024}")
    e(f"s_add_u32 s57, s57, {H_OFF}")
    e("s_add_u32 s59, s57, 4096")
    e("s_add_u32 s91, s57, 8192")
    e("s_add_u32 s92, s57, 12288")
    def pollH():
        for u in range(14):
            sreg = ("s57", "s59", "s91", "s92")[u // 4]
            e(f"buffer_load_dwordx4 v[{HR+4*u}:{HR+4*u+3}], v8, {R(SW)}, {sreg} offen offset:{(u%4)*1024} sc1")
    pollH()
    e("v_bfe_u32 v13, v2, 3, 2")
    e("s_lshl_b32 s62, s61, 1")
    e("v_xor_b32 v13, s62, v13")
    e("v_lshrrev_b32 v14, 2, v2")
    e("v_lshlrev_b32 v14, 7, v14")
    e("v_and_b32 v15, 3, v2")
    e("v_lshl_add_u32 v14, v15, 3, v14")
    e("s_mul_i32 s62, s61, 28672")
    e(f"s_add_u32 s62, s62, {WD_BASE}")
    e("v_add_u32 v14, s62, v14")
    for n4 in range(4):
        e(f"v_xor_b32 v{32+n4}, {n4}, v13")
        e(f"v_lshl_add_u32 v{32+n4}, v{32+n4}, 5, v14")
    for S in range(7):
        for n4 in range(4):
            for h in range(2):
                r = DF + (S*4+n4)*4 + h*2
                e(f"ds_read_b64_tr_b16 v[{r}:{r+1}], v{32+n4} offset:{S*4096 + h*2048}")
        e("s_waitcnt lgkmcnt(8)")
    for r in range(16): e(f"v_mov_b32 v{A2+r}, 0")
    for j in range(4):
        e(f"s_bfe_u32 s{48+j}, s26, {(8<<16) | (8*j)}")
    e("v_mov_b32 v1, 0xff")
    e("s_mov_b32 s90, 0")
    e("s_waitcnt vmcnt(0)")
    e("s_branch L_chkH")
    lab("L_pollH")
    e("s_add_u32 s90, s90, 1")
    e(f"s_cmp_ge_u32 s90, {spin}")
    e("s_cbranch_scc1 L_done")
    pollH()
    e("s_waitcnt vmcnt(0)")
    lab("L_chkH")
    first = True
    for u in range(14):
        t0 = HR + 4*u + (0 if u % 2 == 0 else 2)
        for t in (t0, t0+1):
            if first:
                e(f"v_xor_b32 v3, s26, v{t}"); first = False
            else:
                e(f"v_bitop3_b32 v3, v{t}, s26, v3 bitop3:0xbe")
    e("v_cmp_ne_u32 vcc, 0, v3")
    e("s_cbranch_vccnz L_pollH")
    stamp(5)
    e("s_waitcnt lgkmcnt(0)")
    for S in range(7):
        hf = HR + 8*S + 2
        for n4 in (2, 3, 0, 1):
            d = DF + (S*4+n4)*4
            a = A2 + 4*n4
            e(f"v_mfma_f32_16x16x32_bf16 v[{a}:{a+3}], v[{d}:{d+3}], v[{hf}:{hf+3}], v[{a}:{a+3}]")
    e("s_lshl_b32 s62, s3, 11")
    e("v_add_u32 v9, s62, v8")
    e("v_xor_b32 v10, 4096, v9")
    e("v_bfe_u32 v3, v2, 2, 2")
    e("v_lshlrev_b32 v3, 13, v3")
    e("v_lshrrev_b32 v4, 4, v2")
    e("v_lshl_add_u32 v3, v4, 6, v3")
    e("v_and_b32 v4, 3, v2")
    e("v_lshl_add_u32 v3, v4, 4, v3")
    e(f"ds_write_b128 v9, v[{A2+8}:{A2+11}]")
    e(f"ds_write_b128 v9, v[{A2+12}:{A2+15}] offset:1024")
    e("s_lshl_b32 s57, s21, 1")
    e("s_add_u32 s57, s57, s20")
    e("s_lshl_b32 s57, s57, 16")
    e(f"s_add_u32 s57, s57, {C_OFF}")
    e("s_lshl_b32 s59, s60, 15                  ; mt2*4*8192")
    e("s_add_u32 s59, s59, s57")
    e("s_lshl_b32 s91, s18, 10                  ; src*1024")
    e("s_add_u32 s59, s59, s91")
    e("s_lshl_b32 s91, s61, 9                   ; n4 = 2kh + n'")
    e("s_add_u32 s59, s59, s91")
    e("s_lshl_b32 s91, s18, 13")
    e("s_add_u32 s57, s57, s91")
    e("s_lshl_b32 s91, s3, 8")
    e("s_add_u32 s57, s57, s91                  ; inbox + w*256")
    e("v_lshlrev_b32 v5, 2, v2")
    e("v_lshlrev_b32 v4, 3, v4")
    e("v_lshrrev_b32_e64 v4, v4, s26")
    e("s_waitcnt lgkmcnt(0)")
    e("s_barrier")
    e(f"ds_read_b128 v[{A2+8}:{A2+11}], v10")
    e(f"ds_read_b128 v[{A2+12}:{A2+15}], v10 offset:1024")
    for n in range(2):
        e(f"s_waitcnt lgkmcnt({1-n})")
        a = A2 + 4*n
        for j in range(4): e(f"v_add_f32 v{a+j}, v{a+j}, v{a+8+j}")
        for j in range(4): e(f"v_bfi_b32 v{a+j}, v1, s{48+j}, v{a+j}")
        e(f"buffer_store_dwordx4 v[{a}:{a+3}], v3, {R(SW)}, s59 offen offset:{n*256} {stC}")
    stamp(6)
    e("s_add_u32 s59, s57, 4096")
    CR = 40
    e("v_bfe_u32 v9, v2, 2, 2                   ; mm")
    e("v_lshlrev_b32 v9, 11, v9")
    e("v_lshrrev_b32 v10, 4, v2")
    e("v_lshl_add_u32 v9, v10, 3, v9")
    e("v_and_b32 v10, 3, v2")
    e("v_lshl_add_u32 v9, v10, 1, v9")
    e("s_lshl_b32 s91, s20, 3")
    e("s_add_u32 s91, s91, s18")
    e("s_lshl_b32 s91, s91, 13")
    e("s_lshl_b32 s92, s21, 7")
    e("s_add_u32 s91, s91, s92")
    e("s_lshl_b32 s92, s3, 5")
    e("s_add_u32 s91, s91, s92")
    e("s_mov_b32 s90, 0")
    if cwait: e("s_waitcnt vmcnt(0)")
    stamp(7)
    lab("L_pollC")
    e("s_add_u32 s90, s90, 1")
    e(f"s_cmp_ge_u32 s90, {spin}")
    e("s_cbranch_scc1 L_done")
    for s_ in range(8):
        sreg = ("s57", "s59")[s_ // 4]
        e(f"buffer_load_dword v{CR+s_}, v5, {R(SW)}, {sreg} offen offset:{(s_%4)*1024} sc1")
    e("s_waitcnt vmcnt(0)")
    e(f"v_xor_b32 v3, v4, v{CR}")
    for s_ in range(1, 8):
        e(f"v_bitop3_b32 v3, v{CR+s_}, v4, v3 bitop3:0xbe")
    e("v_and_b32 v3, 0xff, v3")
    e("v_cmp_ne_u32 vcc, 0, v3")
    e("s_cbranch_vccnz L_pollC")
    stamp(8)
    st = 1
    while st < 8:
        for s_ in range(0, 8, 2*st):
            e(f"v_add_f32 v{CR+s_}, v{CR+s_}, v{CR+s_+st}")
        st *= 2
    e(f"v_cvt_pk_bf16_f32 v{CR}, v{CR}, v{CR}")
    e(f"buffer_store_short v{CR}, v9, {R(SO)}, s91 offen")
    e("s_or_b32 s57, s2, s3")
    e("s_cmp_lg_u32 s57, 0")
    e("s_cbranch_scc1 L_fin")
    e("s_mov_b32 s90, 0")
    e(f"s_mov_b32 s57, {F_OFF + 112*16}")
    e("v_min_u32 v10, 15, v2")
    e("v_lshlrev_b32 v10, 4, v10")
    lab("L_pollE")
    e("s_add_u32 s90, s90, 1")
    e(f"s_cmp_ge_u32 s90, {spin}")
    e("s_cbranch_scc1 L_done")
    e(f"buffer_load_dword v16, v8, {R(SW)}, s57 offen sc1")
    e(f"buffer_load_dword v17, v8, {R(SW)}, s57 offen offset:1024 sc1")
    e(f"buffer_load_dword v18, v10, {R(SW)}, s57 offen offset:2048 sc1")
    e("s_waitcnt vmcnt(0)")
    e("v_xor_b32 v3, s26, v16")
    e("v_bitop3_b32 v3, v17, s26, v3 bitop3:0xbe")
    e("v_bitop3_b32 v3, v18, s26, v3 bitop3:0xbe")
    e("v_cmp_ne_u32 vcc, 0, v3")
    e("s_cbranch_vccnz L_pollE")
    e("s_add_u32 s57, s25, 0x01010101")
    e("v_mov_b32 v3, s57")
    e("v_mov_b32 v4, 0")
    e("s_mov_b64 exec, 1")
    e(f"buffer_store_dword v3, v4, {R(SW)}, 0 offen offset:{EPOCH_OFF} sc1")
    e("s_mov_b64 exec, -1")
    lab("L_fin")
    if ts:
        e("s_waitcnt vmcnt(0)")
        stamp(9)
        e("s_waitcnt lgkmcnt(0)")
        e("s_cmp_lg_u32 s3, 0")
        e("s_cbranch_scc1 L_done")
        if dbg:
            e("s_load_dwordx2 s[14:15], s[0:1], 40")
            e(f"s_cmp_eq_u32 s2, {dbg[0]}")
            e("s_cselect_b32 s57, 0, 32")
            e("s_cbranch_scc1 L_dbgw")
            e(f"s_cmp_lg_u32 s2, {dbg[1]}")
            e("s_cbranch_scc1 L_done")
            lab("L_dbgw")
            for k, sl in enumerate((1, 2, 3, 4, 5, 6, 8, 9)):
                e(f"s_sub_u32 s59, s{64+2*sl}, s64")
                e(f"v_mov_b32 v{16+k}, s59")
            e("s_waitcnt lgkmcnt(0)")
            srd(48, 14, 256)
            e("v_mov_b32 v3, 0")
            e("s_mov_b64 exec, 1")
            e("buffer_store_dwordx4 v[16:19], v3, s[48:51], s57 offen")
            e("buffer_store_dwordx4 v[20:23], v3, s[48:51], s57 offen offset:16")
            e("s_endpgm")
        e("s_lshl_b32 s57, s2, 7")
        e(f"s_add_u32 s57, s57, {TS_OFF}")
        for r in range(20): e(f"v_mov_b32 v{16+r}, s{64+r}")
        e("v_mov_b32 v3, 0")
        e("s_mov_b64 exec, 1")
        for q in range(5):
            e(f"buffer_store_dwordx4 v[{16+4*q}:{19+4*q}], v3, {R(SW)}, s57 offen offset:{16*q}")
    lab("L_done")
    e("s_endpgm")
    o.append('.section .rodata,"a"\n.p2align 6')
    o.append(f".amdhsa_kernel {NAME}")
    o.append("  .amdhsa_next_free_vgpr 248\n  .amdhsa_next_free_sgpr 96\n  .amdhsa_accum_offset 248")
    o.append("  .amdhsa_group_segment_fixed_size 0\n  .amdhsa_kernarg_size 56\n  .amdhsa_user_sgpr_count 2")
    o.append("  .amdhsa_user_sgpr_kernarg_segment_ptr 1\n  .amdhsa_system_sgpr_workgroup_id_x 1\n.end_amdhsa_kernel")
    open(path, 'w').write('\n'.join(o) + '\n')

if __name__ == "__main__":
    gen('v2.s')
    gen('v2_ts.s', ts=True)
    gen('v2_ts_nht.s', ts=True, htouch=False)
    gen('v2_ts_ncw.s', ts=True, cwait=False)
    gen('v2_dbg.s', ts=True, dbg=(9, 201))
```

```python
import sys
HDR = open('standalone__geglu_ffn__sampling.s.ref').read().split('\n')[:8]
NAME = "standalone__geglu_ffn__sampling_kernel"
WB = 1024*3584*2
EPOCH_OFF = 0
F_OFF = 4096
H_OFF = 65536
BS = 1152
GBIT = 1 << 20
C_OFF = 2 << 20
TS_OFF = 128 << 20
W_RING = 65536
WD_BASE = 98304
EX_BASE = 0
LDS_BYTES = WD_BASE + 57344
KX = 0x5bd1e995

def gen(path, ts=False, spin=1 << 16, exact=False, cmode='ack', amp=None, kto=24, touch=3, local=True, c1=3, early=True, inter=0):
    o = []
    def e(s): o.append("    " + s)
    def lab(s): o.append(s + ":")
    def stamp(i):
        if ts: e(f"s_memrealtime s[{64+2*i}:{65+2*i}]")
    P = lambda r: f"v[{r}:{r+1}]"
    o.extend(HDR)
    o.append(f"; @launch grid=(256,1,1) block=(512,1,1) lds={LDS_BYTES}")
    o.append('.amdgcn_target "amdgcn-amd-amdhsa--gfx950"\n.text')
    o.append(f".globl {NAME}\n.p2align 8\n.type {NAME},@function\n{NAME}:")
    if ts:
        for i in range(1, 8): e(f"s_mov_b64 s[{64+2*i}:{65+2*i}], 0")
    stamp(0)
    e("s_cmp_ge_u32 s2, 256")
    e("s_cbranch_scc1 L_done")
    SX, SG, SU, SD, SO, SW = 28, 32, 36, 40, 44, 52
    R = lambda b: f"s[{b}:{b+3}]"
    for base, off in ((SG, 8), (SU, 16), (SX, 0), (SW, 48), (SD, 24), (SO, 32)):
        e(f"s_load_dwordx2 s[{base}:{base+1}], s[0:1], {off}")
    for base, n in ((SG, WB), (SU, WB), (SX, 131072), (SW, 1 << 28), (SD, WB), (SO, 131072)):
        e(f"s_mov_b32 s{base+2}, {n}")
        e(f"s_mov_b32 s{base+3}, 0x00020000")
    e("v_lshrrev_b32 v1, 6, v0")
    e("v_and_b32 v2, 63, v0                     ; lane")
    e("v_readfirstlane_b32 s27, v1              ; wave 0..7")
    e("s_and_b32 s18, s2, 7")
    e("s_lshr_b32 s19, s2, 3")
    e("v_lshrrev_b32 v3, 4, v2                  ; g = l>>4")
    e("v_lshlrev_b32 v8, 4, v2                  ; lane*16")
    e("s_cmp_ge_u32 s19, 14")
    e("s_cselect_b32 s20, 1, 0")
    e("s_mul_i32 s21, s20, 14")
    e("s_sub_u32 s23, s19, s21")
    e("s_cmp_ge_u32 s23, 3")
    e("s_addc_u32 s22, s23, 0")
    e("s_cmp_ge_u32 s23, 10")
    e("s_addc_u32 s21, s22, 0")
    e("s_mov_b32 s24, 0")
    e("s_cmp_lt_u32 s19, 28")
    e("s_cbranch_scc1 L_ids")
    e("s_and_b32 s20, s19, 1")
    e("s_and_b32 s21, s19, 2")
    e("s_lshl_b32 s21, s21, 2")
    e("s_add_u32 s21, s21, 3")
    e("s_mov_b32 s24, s20")
    lab("L_ids")
    e("s_and_b32 s3, s27, 3                     ; w = wave & 3")
    def kwait():
        e("s_waitcnt lgkmcnt(0)")
    def eload():
        e(f"s_load_dword s25, s[{SW}:{SW+1}], {EPOCH_OFF}")
    e("s_cmp_lt_u32 s27, 4")
    e("s_cbranch_scc1 L_math")
    e("v_lshrrev_b32 v5, 3, v2                  ; p = l>>3")
    e("v_and_b32 v4, 6, v5")
    e("v_and_b32 v6, 7, v2")
    e("v_xor_b32 v4, v4, v6")
    e("v_lshlrev_b32 v4, 4, v4")
    e("v_lshl_add_u32 v6, v5, 11, v4")
    e("s_lshl_b32 s58, s3, 10                   ; w*1024")
    def wd_setup():
        e(f"s_mul_i32 s56, s18, {448*2048}")
        e("s_lshl_b32 s57, s3, 14")
        e("s_add_u32 s56, s56, s57")
        e("s_lshl_b32 s57, s21, 7")
        e("s_add_u32 s56, s56, s57")
        e("s_lshl_b32 s57, s24, 18")
        e("s_add_u32 s56, s56, s57")
        e(f"s_add_u32 s94, s58, {WD_BASE}")
    def wd_pair():
        e("s_mov_b32 m0, s94")
        e(f"s_add_u32 s95, s56, {7*65536}")
        e(f"buffer_load_dwordx4 v6, {R(SD)}, s56 offen lds")
        e("s_add_u32 m0, s94, 28672")
        e("s_add_u32 s56, s56, 65536")
        e(f"buffer_load_dwordx4 v6, {R(SD)}, s95 offen lds")
        e("s_add_u32 s94, s94, 4096")
    e("s_cmp_ge_u32 s19, 14")
    e("s_cbranch_scc1 L_stream")
    D, XL = 3, 4
    e("s_lshl_b32 s60, s3, 15")
    e("s_add_u32 s61, s60, 16384")
    e("s_lshl_b32 s62, s3, 11")
    def issue_x():
        e("s_mov_b32 m0, s62")
        e("s_nop 0")
        e(f"buffer_load_dwordx4 v6, {R(SX)}, s60 offen lds")
        e("s_add_u32 m0, s62, 1024")
        e("s_add_u32 s60, s60, 128")
        e(f"buffer_load_dwordx4 v6, {R(SX)}, s61 offen lds")
        e("s_add_u32 s61, s61, 128")
        e("s_add_u32 s62, s62, 8192")
        e("s_and_b32 s62, s62, 0xffff")
    kwait()
    lab("L_x0")
    issue_x()
    e(f"s_cmp_lt_u32 s62, {XL*8192}")
    e("s_cbranch_scc1 L_x0")
    eload()
    e("v_bfe_u32 v4, v2, 2, 2                   ; r")
    e("v_lshl_add_u32 v4, v3, 3, v4")
    e("v_mul_u32_u24 v4, 7168, v4")
    e("v_and_b32 v5, 1, v3")
    e("v_lshlrev_b32 v5, 1, v5")
    e("v_and_b32 v7, 3, v2")
    e("v_xor_b32 v5, v5, v7")
    e("v_lshl_add_u32 v7, v5, 4, v4")
    e("s_lshr_b32 s57, s3, 1")
    e("s_lshl_b32 s57, s57, 5")
    e("s_and_b32 s59, s3, 1")
    e("s_lshl_b32 s59, s59, 2")
    e("s_add_u32 s57, s57, s59")
    e("s_mul_i32 s57, s57, 7168")
    e("s_mul_i32 s59, s18, 896")
    e("s_add_u32 s57, s57, s59")
    e("s_lshl_b32 s59, s19, 6")
    e("s_add_u32 s59, s57, s59                  ; W soffset")
    e("s_mov_b32 s63, s58")
    e("s_mov_b32 s90, 0")
    def issue_w():
        e(f"s_add_u32 m0, s63, {W_RING}")
        e("s_add_u32 s90, s90, 1")
        e(f"buffer_load_dwordx4 v7, {R(SG)}, s59 offen lds")
        e(f"s_add_u32 m0, s63, {W_RING + 4096}")
        e("s_add_u32 s63, s63, 8192")
        e(f"buffer_load_dwordx4 v7, {R(SU)}, s59 offen lds")
        e(f"s_add_u32 s59, s59, {64*7168}")
        e("s_and_b32 s63, s63, 0x7fff")
    lab("L_ld")
    issue_w(); issue_x()
    e(f"s_cmp_lt_u32 s90, {D}")
    e("s_cbranch_scc1 L_ld")
    e("s_waitcnt vmcnt(10) lgkmcnt(0)")
    e("s_barrier                                ; B0..B9")
    e("s_cmp_lt_u32 s90, 12")
    e("s_cbranch_scc1 L_ld")
    for i, n in enumerate((8, 6, 4, 4)):
        issue_w()
        e(f"s_waitcnt vmcnt({n})")
        e(f"s_barrier                                ; B{10+i}")
    wd_setup()
    e("s_waitcnt vmcnt(2)")
    e("s_barrier                                ; B14")
    e("s_waitcnt vmcnt(0)")
    e("s_barrier                                ; B15")
    stamp(1)
    for _ in range(c1): wd_pair()
    e("s_barrier                                ; BX")
    e(f"s_branch L_wd2{'' if c1 == 3 else '_%d' % c1}")
    lab("L_stream")
    e("v_lshlrev_b32 v7, 7, v2                  ; lane*128")
    def do_touch():
        e(f"s_mul_i32 s60, s18, {56*BS}")
        e(f"s_mul_i32 s61, s23, {28*128}")
        e("s_add_u32 s60, s60, s61")
        e(f"s_add_u32 s60, s60, {H_OFF}")
        e("s_mov_b64 exec, 0xfffffff")
        e(f"buffer_load_dword v16, v7, {R(SW)}, s60 offen sc1")
        e("s_mov_b64 exec, -1")
    e("s_cmp_lg_u32 s3, 0")
    e("s_cbranch_scc1 L_nopf")
    e("s_and_b32 s57, s23, 15")
    e("s_lshl_b32 s57, s57, 13")
    e("v_mul_u32_u24 v4, 9363, v2")
    e("v_lshrrev_b32 v4, 16, v4")
    e("v_mul_u32_u24 v5, 7, v4")
    e("v_sub_u32 v5, v2, v5")
    e("v_min_u32 v4, 8, v4")
    e("v_mul_u32_u24 v4, 7168, v4")
    e("v_lshl_add_u32 v4, v5, 7, v4")
    e("s_mul_i32 s59, s18, 896")
    e(f"s_mul_i32 s60, s23, {9*7168}")
    e("s_add_u32 s59, s59, s60")
    kwait()
    e(f"buffer_load_dword v16, v7, {R(SX)}, s57 offen")
    if touch == 3: do_touch()
    lab("L_pf")
    e(f"buffer_load_dword v16, v4, {R(SG)}, s59 offen")
    e(f"buffer_load_dword v17, v4, {R(SU)}, s59 offen")
    e(f"s_add_u32 s59, s59, {18*9*7168}")
    e(f"s_cmp_lt_u32 s59, {972*7168}")
    e(f"s_cbranch_scc1 L_pf")
    e(f"s_mul_i32 s60, s23, {6*7168}")
    e("s_sub_u32 s59, s59, s60")
    e("s_mov_b64 exec, 0x1fffff")
    e(f"buffer_load_dword v16, v4, {R(SG)}, s59 offen")
    e(f"buffer_load_dword v17, v4, {R(SU)}, s59 offen")
    e("s_mov_b64 exec, -1")
    if touch == 1: do_touch()
    lab("L_nopf")
    kwait()
    eload()
    wd_setup()
    e("s_waitcnt lgkmcnt(0)")
    e("s_barrier                                ; BP")
    for _ in range(3): wd_pair()
    if touch == 2:
        e("s_cmp_lg_u32 s3, 3")
        e("s_cbranch_scc1 L_wd2")
        do_touch()
    lab("L_wd2")
    e(f"s_mul_i32 s60, s24, {7*65536}")
    e("s_sub_u32 s56, s56, s60")
    for q in range(4):
        wd_pair()
        if c1 == 4 + q: lab(f"L_wd2_{c1}")
    e(f"s_xor_b32 s26, s25, {KX}")
    e("s_lshl_b32 s57, s21, 1")
    e("s_add_u32 s57, s57, s20")
    e("s_lshl_b32 s57, s57, 16")
    e(f"s_add_u32 s57, s57, {C_OFF}")
    e("s_lshl_b32 s91, s18, 13")
    e("s_add_u32 s57, s57, s91")
    e("s_lshl_b32 s91, s3, 8")
    e("s_add_u32 s57, s57, s91                  ; inbox + w*256")
    e("s_add_u32 s59, s57, 4096")
    e("s_waitcnt vmcnt(8)")
    e("s_barrier                                ; BW1")
    e("v_lshlrev_b32 v5, 2, v2")
    e("v_and_b32 v10, 3, v2")
    e("v_lshlrev_b32 v4, 3, v10")
    e("v_lshrrev_b32_e64 v4, v4, s26")
    e("v_bfe_u32 v9, v2, 2, 2                   ; mm")
    e("v_lshlrev_b32 v9, 11, v9")
    e("v_lshl_add_u32 v9, v3, 3, v9")
    e("v_lshl_add_u32 v9, v10, 1, v9")
    e("s_lshl_b32 s91, s20, 3")
    e("s_add_u32 s91, s91, s18")
    e("s_lshl_b32 s91, s91, 13")
    e("s_lshl_b32 s92, s21, 7")
    e("s_add_u32 s91, s91, s92")
    e("s_lshl_b32 s92, s3, 5")
    e("s_add_u32 s91, s91, s92")
    e("s_mov_b32 s90, 0")
    e("s_waitcnt vmcnt(0)")
    e("s_barrier                                ; BW2")
    stamp(2)
    e("s_barrier                                ; BE")
    if cmode == 'ack': e("s_barrier                                ; BY")
    elif cmode: e(f"s_sleep {cmode}")
    stamp(3)
    CR = 16
    lab("L_pollC")
    for s_ in range(8):
        sreg = ("s57", "s59")[s_ // 4]
        e(f"buffer_load_dword v{CR+s_}, v5, {R(SW)}, {sreg} offen offset:{(s_%4)*1024} sc1")
    e("s_add_u32 s90, s90, 1")
    e(f"s_cmp_ge_u32 s90, {spin}")
    e("s_cbranch_scc1 L_done")
    e("s_waitcnt vmcnt(0)")
    e(f"v_xor_b32 v3, v4, v{CR}")
    for s_ in range(1, 8):
        e(f"v_bitop3_b32 v3, v{CR+s_}, v4, v3 bitop3:0xbe")
    e("v_and_b32 v3, 0xff, v3")
    e("v_cmp_ne_u32 vcc, 0, v3")
    e("s_cbranch_vccnz L_pollC")
    stamp(4)
    e(f"v_pk_add_f32 {P(CR)}, {P(CR)}, {P(CR+2)}")
    e(f"v_pk_add_f32 {P(CR+4)}, {P(CR+4)}, {P(CR+6)}")
    e(f"v_pk_add_f32 {P(CR)}, {P(CR)}, {P(CR+4)}")
    e(f"v_add_f32 v{CR}, v{CR}, v{CR+1}")
    e(f"v_cvt_pk_bf16_f32 v{CR}, v{CR}, v{CR}")
    e(f"buffer_store_short v{CR}, v9, {R(SO)}, s91 offen")
    e("s_or_b32 s57, s2, s3")
    e("s_cmp_lg_u32 s57, 0")
    e(f"s_cbranch_scc1 {'L_fin0' if ts else 'L_done'}")
    e("s_barrier")
    if ts:
        lab("L_fin0")
        e("s_mul_i32 s90, s90, 100")
        e("s_add_u32 s76, s64, s90")
        e("s_addc_u32 s77, s65, 0")
        e("s_waitcnt vmcnt(0)")
        stamp(5)
        e("s_branch L_fin")
    else:
        e("s_endpgm")
    lab("L_math")
    e("s_getreg_b32 s92, hwreg(HW_REG_XCC_ID)")
    kwait()
    eload()
    ACC, BUF = 16, (32, 72)
    HR, DF, A2 = 176, 64, 16
    WA, PA, TMP, HG = 204, 208, 209, 212
    e("s_lshl_b32 s57, s18, 2")
    e("s_add_u32 s57, s57, s3")
    e("s_mul_i32 s57, s57, 14")
    e("s_add_u32 s57, s57, s19")
    e(f"s_mul_i32 s57, s57, {BS}")
    e(f"s_add_u32 s56, s57, {H_OFF}")
    e(f"s_add_u32 s58, s56, {GBIT}")
    e("s_mov_b32 s94, 0")
    e("s_cmp_ge_u32 s19, 14")
    e("s_cbranch_scc1 L_msetup")
    e("s_mov_b32 s94, 1")
    e("v_and_b32 v9, 15, v2")
    e("v_and_b32 v11, 6, v9")
    e("v_xor_b32 v11, v11, v3")
    e("v_lshlrev_b32 v11, 4, v11")
    e("v_lshl_add_u32 v11, v9, 7, v11")
    e("s_lshl_b32 s62, s3, 11")
    e("v_add_u32 v11, s62, v11")
    e("v_xor_b32 v12, 64, v11")
    e("v_lshrrev_b32 v13, 2, v2")
    e("v_lshlrev_b32 v13, 6, v13")
    e("v_and_b32 v14, 3, v2")
    e("v_lshl_add_u32 v13, v14, 3, v13")
    e("v_and_b32 v14, 1, v3")
    e("v_lshl_add_u32 v13, v14, 5, v13")
    e(f"v_add_u32 v13, {W_RING}, v13             ; t=0")
    e("v_xor_b32 v14, 32, v13                   ; t=1")
    for r in range(16): e(f"v_mov_b32 v{ACC+r}, 0")
    for r in range(40): e(f"v_mov_b32 v{BUF[1]+r}, 0")
    lab("L_msetup")
    e("s_and_b32 s60, s3, 1                     ; mt2")
    e("s_lshr_b32 s61, s3, 1                    ; kh")
    e("s_lshl_b32 s57, s18, 1")
    e("s_add_u32 s57, s57, s20")
    e("s_lshl_b32 s57, s57, 1")
    e("s_add_u32 s57, s57, s60")
    e("s_lshl_b32 s57, s57, 1")
    e("s_add_u32 s57, s57, s61")
    e(f"s_mul_i32 s57, s57, {7*BS}")
    e(f"s_add_u32 s93, s57, {H_OFF + (0 if local else GBIT)}")
    e(f"s_mul_i32 s91, s24, {4*BS}")
    e("s_add_u32 s59, s93, s91")
    e(f"s_mul_i32 s91, s24, {3*BS}")
    e("s_sub_u32 s57, s93, s91")
    e(f"s_add_u32 s57, s57, {3*BS}")
    e(f"v_mul_u32_u24 v{PA}, {BS}, v2")
    e(f"v_bfe_u32 v{TMP}, v2, 3, 2")
    e("s_lshl_b32 s62, s61, 1")
    e(f"v_xor_b32 v{TMP}, s62, v{TMP}")
    e("v_lshrrev_b32 v10, 2, v2")
    e("v_lshlrev_b32 v10, 7, v10")
    e("v_and_b32 v15, 3, v2")
    e("v_lshl_add_u32 v10, v15, 3, v10")
    e("s_mul_i32 s62, s61, 28672")
    e(f"s_add_u32 s62, s62, {WD_BASE}")
    e("v_add_u32 v10, s62, v10")
    for n4 in range(4):
        e(f"v_xor_b32 v{WA+n4}, {n4}, v{TMP}")
        e(f"v_lshl_add_u32 v{WA+n4}, v{WA+n4}, 5, v10")
    e("s_lshl_b32 s62, s3, 11")
    e("v_add_u32 v9, s62, v8")
    e("v_xor_b32 v10, 4096, v9")
    e(f"v_bfe_u32 v{TMP}, v2, 2, 2")
    e(f"v_lshlrev_b32 v{TMP}, 13, v{TMP}")
    e(f"v_lshl_add_u32 v{TMP}, v3, 6, v{TMP}")
    e(f"v_lshl_add_u32 v15, v15, 4, v{TMP}")
    e("s_lshl_b32 s62, s21, 1")
    e("s_add_u32 s62, s62, s20")
    e("s_lshl_b32 s62, s62, 16")
    e(f"s_add_u32 s62, s62, {C_OFF}")
    e("s_lshl_b32 s91, s60, 15")
    e("s_add_u32 s62, s62, s91")
    e("s_lshl_b32 s91, s18, 10")
    e("s_add_u32 s62, s62, s91")
    e("s_lshl_b32 s91, s61, 9")
    e("s_add_u32 s62, s62, s91")
    e("v_mov_b32 v1, 0xff")
    e("s_mov_b32 s60, 0xbdd2d3e8")
    e("s_mov_b32 s61, 0xbdd2d3e8")
    e("s_mov_b32 s90, 0")
    e("s_waitcnt lgkmcnt(0)")
    e(f"s_xor_b32 s26, s25, {KX}                ; tag32")
    for j in range(4):
        e(f"s_bfe_u32 s{48+j}, s26, {(8<<16) | (8*j)}")
    for r in range(4): e(f"v_mov_b32 v{4+r}, s26")
    e("s_and_b32 s92, s92, 15")
    e("s_add_u32 s92, s92, 1")
    e("s_mul_i32 s92, s92, 0x9e3779b1")
    e("s_xor_b32 s95, s26, s92")
    e(f"v_mov_b32 v{TMP+1}, s95")
    if not local: e("s_mov_b32 s95, s26")
    e("s_barrier                                ; B0 / BP")
    e("s_cmp_lt_u32 s19, 14")
    e("s_cbranch_scc1 L_k0")
    e("s_cmp_lg_u32 s3, 0")
    e("s_cbranch_scc1 L_phase2")
    e("s_lshl_b32 s91, s2, 7")
    e(f"s_add_u32 s91, s91, {F_OFF}")
    e("s_mov_b64 exec, 0xff")
    e(f"buffer_store_dwordx4 v[4:7], v8, {R(SW)}, s91 offen sc1")
    e("s_mov_b64 exec, -1")
    e("s_branch L_phase2")
    def rlist(buf, base):
        L = []
        for ks in range(2):
            L.append(f"ds_read_b128 v[{buf+4*ks}:{buf+4*ks+3}], v{11+ks} offset:{base}")
            for mat in range(2):
                for t in range(2):
                    for h in range(2):
                        r = buf + 8 + ((ks*2+mat)*2+t)*4 + h*2
                        L.append(f"ds_read_b64_tr_b16 v[{r}:{r+1}], v{13+t} offset:{base + mat*4096 + (ks*2+h)*1024}")
        return L
    def mlist(buf):
        L = []
        for ks in range(2):
            for mat in range(2):
                for t in range(2):
                    a = ACC + t*8 + mat*4
                    wf = buf + 8 + ((ks*2+mat)*2+t)*4
                    L.append(f"v_mfma_f32_16x16x32_bf16 v[{a}:{a+3}], v[{wf}:{wf+3}], v[{buf+4*ks}:{buf+4*ks+3}], v[{a}:{a+3}]")
        return L
    def step(rbuf, base, mbuf):
        rl, ml = rlist(rbuf, base), mlist(mbuf)
        for n, m in zip((3, 3, 2, 2, 2, 2, 2, 2), ml):
            for _ in range(n): e(rl.pop(0))
            e(m)
    lab("L_k")
    e("s_waitcnt lgkmcnt(0)")
    e("s_barrier                                ; B(2p)")
    lab("L_k0")
    step(BUF[0], 0, BUF[1])
    e("s_waitcnt lgkmcnt(0)")
    e("s_barrier                                ; B(2p+1)")
    step(BUF[1], 8192, BUF[0])
    for r in (11, 12):
        e(f"v_add_u32 v{r}, 0x4000, v{r}")
        e(f"v_and_b32 v{r}, 0xffff, v{r}")
    for r in (13, 14): e(f"v_xor_b32 v{r}, 0x4000, v{r}")
    e("s_add_u32 s90, s90, 1")
    e("s_cmp_lt_u32 s90, 8")
    e("s_cbranch_scc1 L_k")
    T = 32
    e(f"v_mov_b32 v{T+16}, 0xc0135761")
    e(f"v_mov_b32 v{T+17}, 0xc0135761")
    ml = mlist(BUF[1])
    for q in range(4):
        e(f"s_waitcnt lgkmcnt({(13, 9, 4, 0)[q]})")
        e(ml[2*q]); e(ml[2*q+1])
    stamp(1)
    e("s_mov_b32 s90, 0")
    e("s_nop 4" if not exact else "s_nop 6")
    Gp = [ACC, ACC+2, ACC+8, ACC+10]
    Up = [g + 4 for g in Gp]
    if exact:
        for k in range(8): e(f"v_cvt_pk_bf16_f32 v{T+k}, v{ACC+2*k}, v{ACC+2*k+1}")
        for k in range(8):
            e(f"v_lshlrev_b32 v{ACC+2*k}, 16, v{T+k}")
            e(f"v_and_b32 v{ACC+2*k+1}, 0xffff0000, v{T+k}")
    for i in range(4): e(f"v_pk_mul_f32 {P(T+2*i)}, {P(Gp[i])}, {P(Gp[i])}")
    for i in range(4): e(f"v_pk_fma_f32 {P(T+2*i)}, {P(T+2*i)}, s[60:61], {P(T+16)}")
    for i in range(4): e(f"v_pk_mul_f32 {P(T+2*i)}, {P(T+2*i)}, {P(Gp[i])}")
    for i in range(8): e(f"v_exp_f32 v{T+i}, v{T+i}")
    if not exact:
        for i in range(4): e(f"v_pk_mul_f32 {P(Gp[i])}, {P(Gp[i])}, {P(Up[i])}")
    for i in range(4): e(f"v_pk_add_f32 {P(T+2*i)}, {P(T+2*i)}, 1.0 op_sel_hi:[1,0]")
    for i in range(8): e(f"v_rcp_f32 v{T+i}, v{T+i}")
    for i in range(4): e(f"v_pk_mul_f32 {P(T+2*i)}, {P(T+2*i)}, {P(Gp[i])}")
    if exact:
        for k in range(4): e(f"v_cvt_pk_bf16_f32 v{T+8+k}, v{T+2*k}, v{T+2*k+1}")
        for k in range(4):
            e(f"v_lshlrev_b32 v{T+2*k}, 16, v{T+8+k}")
            e(f"v_and_b32 v{T+2*k+1}, 0xffff0000, v{T+8+k}")
        for i in range(4): e(f"v_pk_mul_f32 {P(T+2*i)}, {P(T+2*i)}, {P(Up[i])}")
    for k in range(4): e(f"v_cvt_pk_bf16_f32 v{HG+k}, v{T+2*k}, v{T+2*k+1}")
    def publish(sreg, fl, mid=None):
        e(f"buffer_store_dwordx4 v[{HG}:{HG+3}], v8, {R(SW)}, {sreg} offen {fl}")
        e("s_waitcnt vmcnt(0)")
        if mid: e(mid)
        if fl:
            e("s_mov_b64 exec, 0xff")
            e(f"buffer_store_dwordx4 v[4:7], v8, {R(SW)}, {sreg} offen offset:1024 {fl}")
        else:
            e("s_mov_b64 exec, 1")
            e(f"buffer_store_dword v{TMP+1}, v8, {R(SW)}, {sreg} offen offset:1024")
        e("s_mov_b64 exec, -1")
    def poll():
        e(f"v_mov_b32 v{TMP}, s95")
        e("s_mov_b64 exec, 0x7f")
        e(f"buffer_load_dword v{TMP}, v{PA}, {R(SW)}, s93 offen offset:1024 sc1")
        e("s_mov_b64 exec, -1")
    if local: publish("s56", "")
    else:
        publish("s58", "sc1"); e("s_mov_b32 s94, 0")
    if early: poll()
    e("s_barrier                                ; BX")
    stamp(2)
    if early: e("s_branch L_p2a")
    lab("L_phase2")
    if early:
        e(f"v_not_b32 v{TMP}, v{TMP+1}")
        lab("L_p2a")
    def wdlist(s0, s1):
        L = []
        for S in range(s0, s1):
            for n4 in (2, 3, 0, 1):
                for h in range(2):
                    r = DF + (S*4+n4)*4 + h*2
                    L.append(f"ds_read_b64_tr_b16 v[{r}:{r+1}], v{WA+n4} offset:{S*4096 + h*2048}")
        return L
    e("s_barrier                                ; BW1")
    for l in wdlist(0, 3): e(l)
    for r in range(16): e(f"v_mov_b32 v{A2+r}, 0")
    if not early:
        e("s_barrier                                ; BW2")
        stamp(3)
        poll()
        if not inter:
            for l in wdlist(3, 7): e(l)
    e("s_branch L_chkH")
    lab("L_slowH")
    e(f"s_cmp_ge_u32 s90, {spin}")
    e("s_cbranch_scc1 L_done")
    for r in (57, 59, 93): e(f"s_xor_b32 s{r}, s{r}, {GBIT}")
    e("s_xor_b32 s95, s95, s92")
    e("s_cmp_eq_u32 s94, 0")
    e("s_cbranch_scc1 L_poll1")
    publish("s58", "sc1")
    e("s_mov_b32 s94, 0")
    e("s_branch L_poll1")
    lab("L_pollH")
    e("s_add_u32 s90, s90, 1")
    e(f"s_cmp_ge_u32 s90, {kto}")
    e("s_cbranch_scc1 L_slowH")
    lab("L_poll1")
    poll()
    lab("L_chkH")
    e("s_waitcnt vmcnt(0)")
    e(f"v_cmp_ne_u32 vcc, s95, v{TMP}")
    e("s_cbranch_vccnz L_pollH")
    stamp(4)
    if inter and early:
        e("s_barrier                                ; BW2")
        stamp(3)
    if inter and ts: e("s_waitcnt lgkmcnt(0)")
    wl = wdlist(3, 7)
    for S in range(7):
        sreg, off = ("s59", S*BS) if S < 3 else ("s57", (S-3)*BS)
        e(f"buffer_load_dwordx4 v[{HR+4*S}:{HR+4*S+3}], v8, {R(SW)}, {sreg} offen offset:{off} sc1")
        if inter:
            for _ in range((5, 5, 5, 5, 6, 6, 0)[S]): e(wl.pop(0))
    if early and not inter:
        e("s_barrier                                ; BW2")
        stamp(3)
        if ts: e("s_waitcnt lgkmcnt(0)")
        for l in wdlist(3, 7): e(l)
    for S in range(7):
        hf = HR + 4*S
        lg = 0 if not (early or inter) else min(14, max(0, (6 - S) * 8))
        if early and S < 3: lg = 14
        e(f"s_waitcnt vmcnt({6-S}) lgkmcnt({lg})")
        for q, n4 in enumerate((2, 3, 0, 1)):
            d = DF + (S*4+n4)*4
            a = A2 + 4*n4
            e(f"v_mfma_f32_16x16x32_bf16 v[{a}:{a+3}], v[{d}:{d+3}], v[{hf}:{hf+3}], v[{a}:{a+3}]")
    e("s_nop 5")
    stamp(5)
    e(f"ds_write_b128 v9, v[{A2+8}:{A2+11}]")
    e(f"ds_write_b128 v9, v[{A2+12}:{A2+15}] offset:1024")
    e("s_waitcnt lgkmcnt(0)")
    e("s_barrier                                ; BE")
    e(f"ds_read_b128 v[{A2+8}:{A2+11}], v10")
    e(f"ds_read_b128 v[{A2+12}:{A2+15}], v10 offset:1024")
    for n in range(2):
        e(f"s_waitcnt lgkmcnt({1-n})")
        a = A2 + 4*n
        e(f"v_pk_add_f32 {P(a)}, {P(a)}, {P(a+8)}")
        e(f"v_pk_add_f32 {P(a+2)}, {P(a+2)}, {P(a+10)}")
        for j in range(4): e(f"v_bfi_b32 v{a+j}, v1, s{48+j}, v{a+j}")
        e(f"buffer_store_dwordx4 v[{a}:{a+3}], v15, {R(SW)}, s62 offen offset:{n*256} sc1")
    stamp(6)
    e("s_cmp_eq_u32 s94, 0")
    e("s_cbranch_scc1 L_nopub")
    publish("s58", "sc1", "s_barrier                                ; BY" if cmode == 'ack' else None)
    e("s_branch L_pub")
    lab("L_nopub")
    if cmode == 'ack':
        e("s_waitcnt vmcnt(0)")
        e("s_barrier                                ; BY")
    lab("L_pub")
    e("s_or_b32 s57, s2, s3")
    e("s_cmp_lg_u32 s57, 0")
    e(f"s_cbranch_scc1 {'L_fin' if ts else 'L_done'}")
    e("s_mov_b32 s90, 0")
    e(f"s_mov_b32 s57, {F_OFF + 112*128}")
    e("v_min_u32 v44, 47, v2")
    e("v_mul_u32_u24 v44, 384, v44")
    lab("L_pollE")
    e("s_add_u32 s90, s90, 1")
    e(f"s_cmp_ge_u32 s90, {spin}")
    e("s_cbranch_scc1 L_done")
    for q in range(3): e(f"buffer_load_dword v{40+q}, v44, {R(SW)}, s57 offen offset:{128*q} sc1")
    e("s_waitcnt vmcnt(0)")
    e("v_xor_b32 v3, s26, v40")
    for r in (41, 42): e(f"v_bitop3_b32 v3, v{r}, s26, v3 bitop3:0xbe")
    e("v_cmp_ne_u32 vcc, 0, v3")
    e("s_cbranch_vccnz L_pollE")
    e("s_add_u32 s57, s25, 0x01010101")
    e("v_mov_b32 v3, s57")
    e("v_mov_b32 v4, 0")
    e("s_barrier                                ; BZ")
    e("s_mov_b64 exec, 1")
    e(f"buffer_store_dword v3, v4, {R(SW)}, 0 offen offset:{EPOCH_OFF} sc1")
    e("s_mov_b64 exec, -1")
    if ts:
        lab("L_fin")
        e("s_waitcnt vmcnt(0)")
        stamp(7)
        e("s_waitcnt lgkmcnt(0)")
        if amp:
            e(f"s_cmp_lg_u32 s2, {amp[0]}")
            e("s_cbranch_scc1 L_done")
            e(f"s_cmp_lg_u32 s27, {amp[1]}")
            e("s_cbranch_scc1 L_done")
            e(f"s_sub_u32 s59, s{64+2*amp[2]}, s64")
            e("s_min_u32 s59, s59, 5000")
            e("s_mul_i32 s59, s59, 10")
            lab("L_amp")
            e("s_memrealtime s[60:61]")
            e("s_waitcnt lgkmcnt(0)")
            e(f"s_sub_u32 s62, s60, s{64+14}")
            e("s_cmp_lt_u32 s62, s59")
            e("s_cbranch_scc1 L_amp")
            e("s_endpgm")
        e("s_cmp_lg_u32 s3, 0")
        e("s_cbranch_scc1 L_done")
        e("s_lshl_b32 s57, s2, 7")
        e("s_lshl_b32 s59, s27, 4                   ; wave 4 -> +64")
        e("s_add_u32 s57, s57, s59")
        e(f"s_add_u32 s57, s57, {TS_OFF}")
        for r in range(16): e(f"v_mov_b32 v{16+r}, s{64+r}")
        e("v_mov_b32 v3, 0")
        e("s_mov_b64 exec, 1")
        for q in range(4):
            e(f"buffer_store_dwordx4 v[{16+4*q}:{19+4*q}], v3, {R(SW)}, s57 offen offset:{16*q}")
    lab("L_done")
    e("s_endpgm")
    o.append('.section .rodata,"a"\n.p2align 6')
    o.append(f".amdhsa_kernel {NAME}")
    o.append("  .amdhsa_next_free_vgpr 216\n  .amdhsa_next_free_sgpr 98\n  .amdhsa_accum_offset 216")
    o.append("  .amdhsa_group_segment_fixed_size 0\n  .amdhsa_kernarg_size 56\n  .amdhsa_user_sgpr_count 2")
    o.append("  .amdhsa_user_sgpr_kernarg_segment_ptr 1\n  .amdhsa_system_sgpr_workgroup_id_x 1\n.end_amdhsa_kernel")
    open(path, 'w').write('\n'.join(o) + '\n')

if __name__ == "__main__":
    gen('v7.s', exact=True, touch=1)
    gen('v7_ts_ne.s', ts=True, touch=1, early=False)
    gen('v7_ts_i1.s', ts=True, touch=1, early=False, inter=1)
    gen('v7_ts_i2.s', ts=True, touch=1, early=True, inter=1)
```

```python
import sys
HDR = open('standalone__geglu_ffn__sampling.s.ref').read().split('\n')[:8]
NAME = "standalone__geglu_ffn__sampling_kernel"
WB = 1024*3584*2
EPOCH_OFF = 0
F_OFF = 4096
H_OFF = 65536
BS = 1152
GBIT = 1 << 20
C_OFF = 2 << 20
TS_OFF = 128 << 20
W_RING = 131072
WD_BASE = 0
EX_BASE = 65536
LDS_BYTES = 163840
KX = 0x5bd1e995

def gen(path, ts=False, spin=1 << 20, exact=False, cmode='iss', amp=None, kto=24, c1=7, early=True,
        tlb=False, peel=True, stop=False, XL=8, cr=0, D=3, gearly=True, bumpfl=''):
    o = []
    def e(s): o.append("    " + s)
    def lab(s): o.append(s + ":")
    def stamp(i):
        if ts: e(f"s_memrealtime s[{64+2*i}:{65+2*i}]")
    P = lambda r: f"v[{r}:{r+1}]"
    SX, SG, SU, SD, SO, SW = 28, 32, 36, 40, 44, 52
    R = lambda b: f"s[{b}:{b+3}]"
    o.extend(HDR)
    o.append(f"; @launch grid=(256,1,1) block=(512,1,1) lds={LDS_BYTES}")
    o.append('.amdgcn_target "amdgcn-amd-amdhsa--gfx950"\n.text')
    o.append(f".globl {NAME}\n.p2align 8\n.type {NAME},@function\n{NAME}:")
    if ts:
        for i in range(1, 8): e(f"s_mov_b64 s[{64+2*i}:{65+2*i}], 0")
    stamp(0)
    e("s_cmp_ge_u32 s2, 256")
    e("s_cbranch_scc1 L_done")
    for base, off in ((SG, 8), (SU, 16), (SX, 0), (SW, 48), (SD, 24), (SO, 32)):
        e(f"s_load_dwordx2 s[{base}:{base+1}], s[0:1], {off}")
    e("v_lshrrev_b32 v1, 6, v0")
    e("v_and_b32 v2, 63, v0                     ; lane")
    e("v_readfirstlane_b32 s27, v1              ; wave 0..7")
    for base, n in ((SG, WB), (SU, WB), (SX, 131072), (SW, 1 << 28), (SD, WB), (SO, 131072)):
        e(f"s_mov_b32 s{base+2}, {n}")
        e(f"s_mov_b32 s{base+3}, 0x00020000")
    e("s_and_b32 s18, s2, 7")
    e("s_lshr_b32 s19, s2, 3")
    e("s_and_b32 s3, s27, 3                     ; w = wave & 3")
    e("v_lshrrev_b32 v3, 4, v2                  ; g = l>>4")
    def kwait(): e("s_waitcnt lgkmcnt(0)")
    def eload(): e(f"s_load_dword s25, s[{SW}:{SW+1}], {EPOCH_OFF}")
    nid = [0]
    def ids():
        n = nid[0]; nid[0] += 1
        e("s_cmp_ge_u32 s19, 14")
        e("s_cselect_b32 s20, 1, 0")
        e("s_mul_i32 s21, s20, 14")
        e("s_sub_u32 s23, s19, s21")
        e("s_cmp_ge_u32 s23, 3")
        e("s_addc_u32 s22, s23, 0")
        e("s_cmp_ge_u32 s23, 10")
        e("s_addc_u32 s21, s22, 0")
        e("s_mov_b32 s24, 0")
        e("s_cmp_lt_u32 s19, 28")
        e(f"s_cbranch_scc1 L_ids{n}")
        e("s_and_b32 s20, s19, 1")
        e("s_and_b32 s21, s19, 2")
        e("s_lshl_b32 s21, s21, 2")
        e("s_add_u32 s21, s21, 3")
        e("s_mov_b32 s24, s20")
        lab(f"L_ids{n}")
    e("s_cmp_lt_u32 s27, 4")
    e("s_cbranch_scc1 L_math")
    e("v_lshrrev_b32 v5, 3, v2                  ; p = l>>3")
    e("v_and_b32 v4, 6, v5")
    e("v_and_b32 v6, 7, v2")
    e("v_xor_b32 v4, v4, v6")
    e("v_lshlrev_b32 v4, 4, v4")
    e("v_lshl_add_u32 v6, v5, 11, v4")
    e("s_lshl_b32 s58, s3, 10                   ; w*1024")
    e("s_lshl_b32 s62, s3, 11")
    e("s_lshl_b32 s63, s3, 15")
    e("s_cmp_lg_u32 s3, 0")
    e("s_cbranch_scc1 L_load")
    e("v_mul_u32_u24 v9, 9363, v2")
    e("v_lshrrev_b32 v9, 16, v9")
    e("v_mul_u32_u24 v5, 7, v9")
    e("v_sub_u32 v5, v2, v5")
    e("v_min_u32 v9, 8, v9")
    e("v_mul_u32_u24 v9, 7168, v9")
    e("v_lshl_add_u32 v9, v5, 7, v9")
    e("s_mul_i32 s59, s18, 896")
    e(f"s_mul_i32 s60, s19, {9*7168}")
    e("s_add_u32 s59, s59, s60")
    if not cr: e(f"s_sub_u32 s59, s59, {126*7168}")
    e("v_lshlrev_b32 v7, 7, v2                  ; lane*128")
    e("s_and_b32 s57, s19, 15")
    e("s_lshl_b32 s57, s57, 13")
    def touch_w():
        e(f"buffer_load_dword v16, v9, {R(SG)}, s59 offen")
        e(f"buffer_load_dword v17, v9, {R(SU)}, s59 offen")
    e("s_cmp_lt_u32 s19, 14")
    kwait()
    e("s_cbranch_scc1 L_ct")
    e(f"buffer_load_dword v16, v7, {R(SX)}, s57 offen")
    rem = (1024 - 126*cr) % 162
    lab("L_pf")
    touch_w()
    e(f"s_add_u32 s59, s59, {162*7168}")
    e(f"s_cmp_lt_u32 s59, {(1024 - rem)*7168}")
    e("s_cbranch_scc1 L_pf")
    k = (rem + 17) // 18
    e("s_sub_u32 s23, s19, 14")
    e(f"s_mul_i32 s60, s23, {(9-k)*7168}")
    e("s_sub_u32 s59, s59, s60")
    e(f"s_min_u32 s59, s59, {WB - 7168}")
    m = (1 << (7*k)) - 1
    e(f"s_mov_b32 exec_lo, {m & 0xffffffff:#x}")
    e(f"s_mov_b32 exec_hi, {m >> 32:#x}")
    touch_w()
    e(f"s_mul_i32 s60, s18, {56*BS}")
    e(f"s_mul_i32 s61, s23, {28*128}")
    e("s_add_u32 s60, s60, s61")
    e(f"s_add_u32 s60, s60, {H_OFF}")
    e("s_mov_b64 exec, 0xfffffff")
    e(f"buffer_load_dword v16, v7, {R(SW)}, s60 offen sc1")
    e("s_mov_b64 exec, -1")
    e("s_branch L_stream")
    def tail_setup():
        ids()
        e(f"s_mul_i32 s56, s18, {448*2048}")
        e("s_lshl_b32 s57, s3, 14")
        e("s_add_u32 s56, s56, s57")
        e("s_lshl_b32 s57, s21, 7")
        e("s_add_u32 s56, s56, s57")
        e("s_lshl_b32 s57, s24, 18")
        e("s_add_u32 s56, s56, s57")
        e(f"s_add_u32 s94, s58, {WD_BASE}")
        e("s_lshl_b32 s96, s21, 1")
        e("s_add_u32 s96, s96, s20")
        e("s_lshl_b32 s96, s96, 16")
        e(f"s_add_u32 s96, s96, {C_OFF}")
        e("s_lshl_b32 s91, s18, 13")
        e("s_add_u32 s96, s96, s91")
        e("s_lshl_b32 s91, s3, 8")
        e("s_add_u32 s96, s96, s91                  ; inbox + w*256")
        e("s_lshl_b32 s91, s20, 3")
        e("s_add_u32 s91, s91, s18")
        e("s_lshl_b32 s91, s91, 13")
        e("s_lshl_b32 s92, s21, 7")
        e("s_add_u32 s91, s91, s92")
        e("s_lshl_b32 s92, s3, 5")
        e("s_add_u32 s91, s91, s92")
    def tlb_touch(n):
        if not tlb: return
        e("s_cmp_lg_u32 s3, 3")
        e(f"s_cbranch_scc1 L_notlb{n}")
        e("s_lshl_b32 s57, s18, 10")
        e("s_add_u32 s57, s57, s96")
        e("v_mov_b32 v18, 0")
        e("s_mov_b64 exec, 1")
        e(f"buffer_load_dword v16, v18, {R(SW)}, s57 offen")
        e(f"buffer_load_dword v17, v18, {R(SO)}, s91 offen")
        e("s_mov_b64 exec, -1")
        lab(f"L_notlb{n}")
    def wd_pair():
        e("s_mov_b32 m0, s94")
        e(f"s_add_u32 s95, s56, {7*65536}")
        e(f"buffer_load_dwordx4 v6, {R(SD)}, s56 offen lds")
        e("s_add_u32 m0, s94, 28672")
        e("s_add_u32 s56, s56, 65536")
        e(f"buffer_load_dwordx4 v6, {R(SD)}, s95 offen lds")
        e("s_add_u32 s94, s94, 4096")
    lab("L_load")
    e("s_cmp_ge_u32 s19, 14")
    kwait()
    e("s_cbranch_scc1 L_stream")
    e("s_branch L_cl")
    lab("L_ct")
    if cr: touch_w()
    lab("L_cl")
    e("s_mov_b32 s60, s63")
    e("s_add_u32 s61, s60, 16384")
    def issue_x():
        e("s_mov_b32 m0, s62")
        e("s_nop 0")
        e(f"buffer_load_dwordx4 v6, {R(SX)}, s60 offen lds")
        e("s_add_u32 m0, s62, 1024")
        e("s_add_u32 s60, s60, 128")
        e(f"buffer_load_dwordx4 v6, {R(SX)}, s61 offen lds")
        e("s_add_u32 s61, s61, 128")
        e("s_add_u32 s62, s62, 8192")
    lab("L_x0")
    issue_x()
    e(f"s_cmp_lt_u32 s62, {XL*8192}")
    e("s_cbranch_scc1 L_x0")
    eload()
    e("v_bfe_u32 v4, v2, 2, 2                   ; r")
    e("v_lshl_add_u32 v4, v3, 3, v4")
    e("v_mul_u32_u24 v4, 7168, v4")
    e("v_and_b32 v5, 1, v3")
    e("v_lshlrev_b32 v5, 1, v5")
    e("v_and_b32 v7, 3, v2")
    e("v_xor_b32 v5, v5, v7")
    e("v_lshl_add_u32 v7, v5, 4, v4")
    e("s_lshr_b32 s57, s3, 1")
    e("s_lshl_b32 s57, s57, 5")
    e("s_and_b32 s59, s3, 1")
    e("s_lshl_b32 s59, s59, 2")
    e("s_add_u32 s57, s57, s59")
    e("s_mul_i32 s57, s57, 7168")
    e("s_mul_i32 s59, s18, 896")
    e("s_add_u32 s57, s57, s59")
    e("s_lshl_b32 s59, s19, 6")
    e("s_add_u32 s59, s57, s59                  ; W soffset")
    e("s_mov_b32 s63, s58")
    e("s_mov_b32 s90, 0")
    def issue_w():
        e(f"s_add_u32 m0, s63, {W_RING}")
        e("s_add_u32 s90, s90, 1")
        e(f"buffer_load_dwordx4 v7, {R(SG)}, s59 offen lds")
        e(f"s_add_u32 m0, s63, {W_RING + 4096}")
        e("s_add_u32 s63, s63, 8192")
        e(f"buffer_load_dwordx4 v7, {R(SU)}, s59 offen lds")
        e(f"s_add_u32 s59, s59, {64*7168}")
        e("s_and_b32 s63, s63, 0x7fff")
    size = lambda g: (2 if g < 16 else 0) + (2 if g + XL < 16 else 0)
    def allowed(i):
        own = 2 if i + XL < 16 else 0
        return own + sum(size(g) for g in range(i+1, i+D))
    nfull = 16 - XL
    nb = 0
    ng = 0
    if nfull >= D:
        lab("L_ld")
        issue_w(); issue_x()
        e(f"s_cmp_lt_u32 s90, {D}")
        e("s_cbranch_scc1 L_ld")
        e(f"s_waitcnt vmcnt({allowed(0)}) lgkmcnt(0)")
        e("s_barrier")
        e(f"s_cmp_lt_u32 s90, {nfull}")
        e("s_cbranch_scc1 L_ld")
        ng = nfull; nb = nfull - D + 1
    else:
        assert nfull == 0
        for _ in range(D - 1): issue_w()
        ng = D - 1
    while ng < 16 and allowed(nb) != 2 * (D - 1):
        issue_w(); ng += 1
        e(f"s_waitcnt vmcnt({allowed(nb)})")
        e(f"s_barrier                                ; B{nb}")
        nb += 1
    if ng < 16:
        lab("L_ldw")
        issue_w()
        e(f"s_waitcnt vmcnt({2*(D-1)}) lgkmcnt(0)")
        e("s_barrier")
        e("s_cmp_lt_u32 s90, 16")
        e("s_cbranch_scc1 L_ldw")
        nb += 16 - ng; ng = 16
    tail_setup()
    while nb < 16:
        e(f"s_waitcnt vmcnt({allowed(nb)})")
        e(f"s_barrier                                ; B{nb}")
        nb += 1
    stamp(1)
    if c1 == 7:
        e("s_branch L_wd")
    else:
        for _ in range(c1): wd_pair()
        e("s_barrier                                ; BX")
        e(f"s_branch L_wd_{c1}")
    lab("L_stream")
    eload()
    tail_setup()
    e("s_waitcnt lgkmcnt(0)")
    e("s_barrier                                ; BP")
    tlb_touch(1)
    lab("L_wd")
    for q in range(7):
        if q == 3:
            e(f"s_mul_i32 s60, s24, {7*65536}")
            e("s_sub_u32 s56, s56, s60")
        if q == c1: lab(f"L_wd_{c1}")
        wd_pair()
    e(f"s_xor_b32 s26, s25, {KX}")
    e("s_add_u32 s59, s96, 4096")
    e("s_waitcnt vmcnt(8)")
    e("s_barrier                                ; BW1")
    e("v_lshlrev_b32 v5, 2, v2")
    e("v_and_b32 v10, 3, v2")
    e("v_lshlrev_b32 v4, 3, v10")
    e("v_lshrrev_b32_e64 v4, v4, s26")
    e("v_bfe_u32 v9, v2, 2, 2                   ; mm")
    e("v_lshlrev_b32 v9, 11, v9")
    e("v_lshl_add_u32 v9, v3, 3, v9")
    e("v_lshl_add_u32 v9, v10, 1, v9")
    e("s_mov_b32 s90, 0")
    e("s_waitcnt vmcnt(0)")
    stamp(2)
    e("s_barrier                                ; BW2")
    if stop: e("s_branch L_fin")
    e("s_barrier                                ; BE")
    if cmode in ('ack', 'iss'): e("s_barrier                                ; BY")
    elif cmode: e(f"s_sleep {cmode}")
    stamp(3)
    CR = 16
    lab("L_pollC")
    for s_ in range(8):
        sreg = ("s96", "s59")[s_ // 4]
        e(f"buffer_load_dword v{CR+s_}, v5, {R(SW)}, {sreg} offen offset:{(s_%4)*1024} sc1")
    e("s_add_u32 s90, s90, 1")
    e(f"s_cmp_ge_u32 s90, {spin}")
    e("s_cbranch_scc1 L_done")
    e("s_waitcnt vmcnt(0)")
    e(f"v_xor_b32 v3, v4, v{CR}")
    for s_ in range(1, 8):
        e(f"v_bitop3_b32 v3, v{CR+s_}, v4, v3 bitop3:0xbe")
    e("v_and_b32 v3, 0xff, v3")
    e("v_cmp_ne_u32 vcc, 0, v3")
    e(f"v_pk_add_f32 {P(CR+8)}, {P(CR)}, {P(CR+2)}")
    e(f"v_pk_add_f32 {P(CR+10)}, {P(CR+4)}, {P(CR+6)}")
    e("s_cbranch_vccnz L_pollC")
    stamp(4)
    e(f"v_pk_add_f32 {P(CR)}, {P(CR+8)}, {P(CR+10)}")
    e(f"v_add_f32 v{CR}, v{CR}, v{CR+1}")
    e(f"v_cvt_pk_bf16_f32 v{CR}, v{CR}, v{CR}")
    e(f"buffer_store_short v{CR}, v9, {R(SO)}, s91 offen")
    e("s_or_b32 s57, s2, s3")
    e("s_cmp_lg_u32 s57, 0")
    e(f"s_cbranch_scc1 {'L_fin0' if ts else 'L_done'}")
    e("s_barrier")
    if ts:
        lab("L_fin0")
        e("s_mul_i32 s90, s90, 100")
        e("s_add_u32 s76, s64, s90")
        e("s_addc_u32 s77, s65, 0")
        e("s_waitcnt vmcnt(0)")
        stamp(5)
        e("s_branch L_fin")
    else:
        e("s_endpgm")
    lab("L_math")
    e("s_getreg_b32 s92, hwreg(HW_REG_XCC_ID)")
    e("v_lshlrev_b32 v8, 4, v2                  ; lane*16")
    ids()
    kwait()
    eload()
    ACC, BUF = 16, (32, 72)
    HR, DF, A2 = 176, 64, 16
    WA, PA, TMP, HG = 204, 208, 209, 212
    e("s_lshl_b32 s57, s18, 2")
    e("s_add_u32 s57, s57, s3")
    e("s_mul_i32 s57, s57, 14")
    e("s_add_u32 s57, s57, s19")
    e(f"s_mul_i32 s57, s57, {BS}")
    e(f"s_add_u32 s56, s57, {H_OFF}")
    e(f"s_add_u32 s58, s56, {GBIT}")
    e("s_mov_b32 s94, 0")
    e("s_cmp_ge_u32 s19, 14")
    e("s_cbranch_scc1 L_msetup")
    e("s_mov_b32 s94, 1")
    e("v_and_b32 v9, 15, v2")
    e("v_and_b32 v11, 6, v9")
    e("v_xor_b32 v11, v11, v3")
    e("v_lshlrev_b32 v11, 4, v11")
    e("v_lshl_add_u32 v11, v9, 7, v11")
    e("s_lshl_b32 s62, s3, 11")
    e("v_add_u32 v11, s62, v11")
    e("v_xor_b32 v12, 64, v11")
    e("v_lshrrev_b32 v13, 2, v2")
    e("v_lshlrev_b32 v13, 6, v13")
    e("v_and_b32 v14, 3, v2")
    e("v_lshl_add_u32 v13, v14, 3, v13")
    e("v_and_b32 v14, 1, v3")
    e("v_lshl_add_u32 v13, v14, 5, v13")
    e(f"v_add_u32 v13, {W_RING}, v13             ; t=0")
    e("v_xor_b32 v14, 32, v13                   ; t=1")
    for r in range(16): e(f"v_mov_b32 v{ACC+r}, 0")
    for r in range(40): e(f"v_mov_b32 v{BUF[1]+r}, 0")
    lab("L_msetup")
    e("s_and_b32 s60, s3, 1                     ; mt2")
    e("s_lshr_b32 s61, s3, 1                    ; kh")
    e("s_lshl_b32 s57, s18, 1")
    e("s_add_u32 s57, s57, s20")
    e("s_lshl_b32 s57, s57, 1")
    e("s_add_u32 s57, s57, s60")
    e("s_lshl_b32 s57, s57, 1")
    e("s_add_u32 s57, s57, s61")
    e(f"s_mul_i32 s57, s57, {7*BS}")
    e(f"s_add_u32 s93, s57, {H_OFF}")
    e(f"s_mul_i32 s91, s24, {4*BS}")
    e("s_add_u32 s59, s93, s91")
    e(f"s_mul_i32 s91, s24, {3*BS}")
    e("s_sub_u32 s57, s93, s91")
    e(f"s_add_u32 s57, s57, {3*BS}")
    e(f"v_mul_u32_u24 v{PA}, {BS}, v2")
    e(f"v_bfe_u32 v{TMP}, v2, 3, 2")
    e("s_lshl_b32 s62, s61, 1")
    e(f"v_xor_b32 v{TMP}, s62, v{TMP}")
    e("v_lshrrev_b32 v10, 2, v2")
    e("v_lshlrev_b32 v10, 7, v10")
    e("v_and_b32 v15, 3, v2")
    e("v_lshl_add_u32 v10, v15, 3, v10")
    e("s_mul_i32 s62, s61, 28672")
    e(f"s_add_u32 s62, s62, {WD_BASE}")
    e("v_add_u32 v10, s62, v10")
    for n4 in range(4):
        e(f"v_xor_b32 v{WA+n4}, {n4}, v{TMP}")
        e(f"v_lshl_add_u32 v{WA+n4}, v{WA+n4}, 5, v10")
    e("s_lshl_b32 s62, s3, 11")
    e(f"s_add_u32 s62, s62, {EX_BASE}")
    e("v_add_u32 v9, s62, v8")
    e("v_xor_b32 v10, 4096, v9")
    e(f"v_bfe_u32 v{TMP}, v2, 2, 2")
    e(f"v_lshlrev_b32 v{TMP}, 13, v{TMP}")
    e(f"v_lshl_add_u32 v{TMP}, v3, 6, v{TMP}")
    e(f"v_lshl_add_u32 v15, v15, 4, v{TMP}")
    e("s_lshl_b32 s62, s21, 1")
    e("s_add_u32 s62, s62, s20")
    e("s_lshl_b32 s62, s62, 16")
    e(f"s_add_u32 s62, s62, {C_OFF}")
    e("s_lshl_b32 s91, s60, 15")
    e("s_add_u32 s62, s62, s91")
    e("s_lshl_b32 s91, s18, 10")
    e("s_add_u32 s62, s62, s91")
    e("s_lshl_b32 s91, s61, 9")
    e("s_add_u32 s62, s62, s91")
    e("v_mov_b32 v1, 0xff")
    e("s_mov_b32 s60, 0xbdd2d3e8")
    e("s_mov_b32 s61, 0xbdd2d3e8")
    e(f"v_mov_b32 v{TMP+2}, 0xc0135761")
    e("s_mov_b32 s90, 0")
    e("s_and_b32 s92, s92, 15")
    e("s_add_u32 s92, s92, 1")
    e("s_mul_i32 s92, s92, 0x9e3779b1")
    e("s_waitcnt lgkmcnt(0)")
    e(f"s_xor_b32 s26, s25, {KX}                ; tag32")
    for j in range(4):
        e(f"s_bfe_u32 s{48+j}, s26, {(8<<16) | (8*j)}")
    for r in range(4): e(f"v_mov_b32 v{4+r}, s26")
    e("s_xor_b32 s95, s26, s92")
    e(f"v_mov_b32 v{TMP+1}, s95")
    e("s_barrier                                ; B0 / BP")
    e("s_cmp_lt_u32 s19, 14")
    e("s_cbranch_scc1 L_k0")
    e("s_cmp_lg_u32 s3, 0")
    e("s_cbranch_scc1 L_phase2")
    e("s_lshl_b32 s91, s2, 7")
    e(f"s_add_u32 s91, s91, {F_OFF}")
    e("s_mov_b64 exec, 0xff")
    e(f"buffer_store_dwordx4 v[4:7], v8, {R(SW)}, s91 offen sc1")
    e("s_mov_b64 exec, -1")
    e("s_branch L_phase2")
    def rlist(buf, base, gate_first=False):
        X = [f"ds_read_b128 v[{buf+4*ks}:{buf+4*ks+3}], v{11+ks} offset:{base}" for ks in range(2)]
        def W(ks, mat):
            L = []
            for t in range(2):
                for h in range(2):
                    r = buf + 8 + ((ks*2+mat)*2+t)*4 + h*2
                    L.append(f"ds_read_b64_tr_b16 v[{r}:{r+1}], v{13+t} offset:{base + mat*4096 + (ks*2+h)*1024}")
            return L
        if gate_first: return [X[0]] + W(0, 0) + [X[1]] + W(1, 0) + W(0, 1) + W(1, 1)
        return [X[0]] + W(0, 0) + W(0, 1) + [X[1]] + W(1, 0) + W(1, 1)
    def mf(buf, ks, mat, t):
        a = ACC + t*8 + mat*4
        wf = buf + 8 + ((ks*2+mat)*2+t)*4
        return f"v_mfma_f32_16x16x32_bf16 v[{a}:{a+3}], v[{wf}:{wf+3}], v[{buf+4*ks}:{buf+4*ks+3}], v[{a}:{a+3}]"
    def mlist(buf): return [mf(buf, ks, mat, t) for ks in range(2) for mat in range(2) for t in range(2)]
    def step(rbuf, base, mbuf):
        rl, ml = rlist(rbuf, base), mlist(mbuf)
        for n, m_ in zip((3, 3, 2, 2, 2, 2, 2, 2), ml):
            for _ in range(n): e(rl.pop(0))
            e(m_)
    lab("L_k")
    e("s_waitcnt lgkmcnt(0)")
    e("s_barrier                                ; B(2p)")
    lab("L_k0")
    step(BUF[0], 0, BUF[1])
    e("s_waitcnt lgkmcnt(0)")
    if peel:
        e("s_cmp_eq_u32 s90, 7")
        e("s_cbranch_scc1 L_klast")
    e("s_barrier                                ; B(2p+1)")
    step(BUF[1], 8192, BUF[0])
    for r in (11, 12):
        e(f"v_add_u32 v{r}, 0x4000, v{r}")
    for r in (13, 14): e(f"v_xor_b32 v{r}, 0x4000, v{r}")
    e("s_add_u32 s90, s90, 1")
    if peel:
        e("s_branch L_k")
        lab("L_klast")
        for m_ in mlist(BUF[0]): e(m_)
        e("s_barrier                                ; B15")
        for l in rlist(BUF[1], 8192, True): e(l)
        for (ks, mat), lg in zip(((0, 0), (1, 0), (0, 1), (1, 1)), (13, 8, 4, 0)):
            e(f"s_waitcnt lgkmcnt({lg})")
            e(mf(BUF[1], ks, mat, 0)); e(mf(BUF[1], ks, mat, 1))
        gap = 1
    else:
        e("s_cmp_lt_u32 s90, 8")
        e("s_cbranch_scc1 L_k")
        ml = mlist(BUF[1])
        for q in range(4):
            e(f"s_waitcnt lgkmcnt({(13, 9, 4, 0)[q]})")
            e(ml[2*q]); e(ml[2*q+1])
        gap = 4
    stamp(1)
    T = 32
    e("s_mov_b32 s90, 0")
    e(f"s_nop {gap}")
    Gp = [ACC, ACC+2, ACC+8, ACC+10]
    Up = [g + 4 for g in Gp]
    C1 = f"v[{TMP+1}:{TMP+2}]"
    def rnd(pairs, t0):
        for i, p_ in enumerate(pairs): e(f"v_cvt_pk_bf16_f32 v{t0+i}, v{p_}, v{p_+1}")
        for i, p_ in enumerate(pairs):
            e(f"v_lshlrev_b32 v{p_}, 16, v{t0+i}")
            e(f"v_and_b32 v{p_+1}, 0xffff0000, v{t0+i}")
    if exact: rnd(Gp, T+8)
    for i in range(4): e(f"v_pk_mul_f32 {P(T+2*i)}, {P(Gp[i])}, {P(Gp[i])}")
    for i in range(4): e(f"v_pk_fma_f32 {P(T+2*i)}, {P(T+2*i)}, s[60:61], {C1} op_sel:[0,0,1] op_sel_hi:[1,1,1]")
    for i in range(4): e(f"v_pk_mul_f32 {P(T+2*i)}, {P(T+2*i)}, {P(Gp[i])}")
    for i in range(8): e(f"v_exp_f32 v{T+i}, v{T+i}")
    if exact: rnd(Up, T+8)
    else:
        for i in range(4): e(f"v_pk_mul_f32 {P(Gp[i])}, {P(Gp[i])}, {P(Up[i])}")
    for i in range(4): e(f"v_pk_add_f32 {P(T+2*i)}, {P(T+2*i)}, 1.0 op_sel_hi:[1,0]")
    for i in range(8): e(f"v_rcp_f32 v{T+i}, v{T+i}")
    for i in range(4): e(f"v_pk_mul_f32 {P(T+2*i)}, {P(T+2*i)}, {P(Gp[i])}")
    if exact:
        rnd([T, T+2, T+4, T+6], T+8)
        for i in range(4): e(f"v_pk_mul_f32 {P(T+2*i)}, {P(T+2*i)}, {P(Up[i])}")
    for k_ in range(4): e(f"v_cvt_pk_bf16_f32 v{HG+k_}, v{T+2*k_}, v{T+2*k_+1}")
    def publish(sreg, fl, mid=()):
        e(f"buffer_store_dwordx4 v[{HG}:{HG+3}], v8, {R(SW)}, {sreg} offen {fl}")
        for l in mid: e(l)
        e("s_waitcnt vmcnt(0)")
        if fl:
            e("s_mov_b64 exec, 0xff")
            e(f"buffer_store_dwordx4 v[4:7], v8, {R(SW)}, {sreg} offen offset:1024 {fl}")
        else:
            e("s_mov_b64 exec, 1")
            e(f"buffer_store_dword v{TMP+1}, v8, {R(SW)}, {sreg} offen offset:1024")
        e("s_mov_b64 exec, -1")
    def poll():
        e(f"v_mov_b32 v{TMP}, s95")
        e("s_mov_b64 exec, 0x7f")
        e(f"buffer_load_dword v{TMP}, v{PA}, {R(SW)}, s93 offen offset:1024 sc1")
        e("s_mov_b64 exec, -1")
    publish("s56", "")
    if early: poll()
    if c1 != 7: e("s_barrier                                ; BX")
    stamp(2)
    if early: e("s_branch L_p2a")
    lab("L_phase2")
    if early:
        e(f"v_not_b32 v{TMP}, v{TMP+1}")
        lab("L_p2a")
    def wdlist(s0, s1):
        L = []
        for S in range(s0, s1):
            for n4 in (2, 3, 0, 1):
                for h in range(2):
                    r = DF + (S*4+n4)*4 + h*2
                    L.append(f"ds_read_b64_tr_b16 v[{r}:{r+1}], v{WA+n4} offset:{S*4096 + h*2048}")
        return L
    e("s_barrier                                ; BW1")
    for l in wdlist(0, 3): e(l)
    e("s_barrier                                ; BW2")
    stamp(3)
    if stop: e("s_branch L_fin")
    if not early: poll()
    e("s_branch L_chkH")
    lab("L_slowH")
    e(f"s_cmp_ge_u32 s90, {spin}")
    e("s_cbranch_scc1 L_done")
    for r in (57, 59, 93): e(f"s_xor_b32 s{r}, s{r}, {GBIT}")
    e("s_xor_b32 s95, s95, s92")
    e("s_cmp_eq_u32 s94, 0")
    e("s_cbranch_scc1 L_poll1")
    publish("s58", "sc1")
    e("s_mov_b32 s94, 0")
    e("s_branch L_poll1")
    lab("L_pollH")
    e("s_add_u32 s90, s90, 1")
    e(f"s_cmp_ge_u32 s90, {kto}")
    e("s_cbranch_scc1 L_slowH")
    lab("L_poll1")
    poll()
    lab("L_chkH")
    e("s_waitcnt vmcnt(0)")
    e(f"v_cmp_ne_u32 vcc, s95, v{TMP}")
    e("s_cbranch_vccnz L_pollH")
    stamp(4)
    if ts: e("s_waitcnt lgkmcnt(0)")
    wl = wdlist(3, 7)
    for S in range(7):
        sreg, off = ("s59", S*BS) if S < 3 else ("s57", (S-3)*BS)
        e(f"buffer_load_dwordx4 v[{HR+4*S}:{HR+4*S+3}], v8, {R(SW)}, {sreg} offen offset:{off} sc1")
        for _ in range((5, 5, 5, 5, 6, 6, 0)[S]): e(wl.pop(0))
    for S in range(7):
        hf = HR + 4*S
        e(f"s_waitcnt vmcnt({6-S}) lgkmcnt({min(14, (6 - S) * 8)})")
        if S == 6 and gearly:
            e("s_cmp_eq_u32 s94, 0")
            e("s_cbranch_scc1 L_nog")
            e(f"buffer_store_dwordx4 v[{HG}:{HG+3}], v8, {R(SW)}, s58 offen sc1")
            lab("L_nog")
        for n4 in (2, 3, 0, 1):
            d = DF + (S*4+n4)*4
            a = A2 + 4*n4
            c = "0" if S == 0 else f"v[{a}:{a+3}]"
            e(f"v_mfma_f32_16x16x32_bf16 v[{a}:{a+3}], v[{d}:{d+3}], v[{hf}:{hf+3}], {c}")
    e("s_nop 4")
    stamp(5)
    e(f"ds_write_b128 v9, v[{A2+8}:{A2+11}]")
    e(f"ds_write_b128 v9, v[{A2+12}:{A2+15}] offset:1024")
    e("s_waitcnt lgkmcnt(0)")
    e("s_barrier                                ; BE")
    e(f"ds_read_b128 v[{A2+8}:{A2+11}], v10")
    e(f"ds_read_b128 v[{A2+12}:{A2+15}], v10 offset:1024")
    for n in range(2):
        e(f"s_waitcnt lgkmcnt({1-n})")
        a = A2 + 4*n
        e(f"v_pk_add_f32 {P(a)}, {P(a)}, {P(a+8)}")
        e(f"v_pk_add_f32 {P(a+2)}, {P(a+2)}, {P(a+10)}")
        for j in range(4): e(f"v_bfi_b32 v{a+j}, v1, s{48+j}, v{a+j}")
        e(f"buffer_store_dwordx4 v[{a}:{a+3}], v15, {R(SW)}, s62 offen offset:{n*256} sc1")
    stamp(6)
    BY = "s_barrier                                ; BY"
    if gearly:
        if cmode == 'ack': e("s_waitcnt vmcnt(0)")
        if cmode in ('ack', 'iss'): e(BY)
        e("s_cmp_eq_u32 s94, 0")
        e("s_cbranch_scc1 L_pub")
        e("s_waitcnt vmcnt(2)")
        e("s_mov_b64 exec, 0xff")
        e(f"buffer_store_dwordx4 v[4:7], v8, {R(SW)}, s58 offen offset:1024 sc1")
        e("s_mov_b64 exec, -1")
    else:
        e("s_cmp_eq_u32 s94, 0")
        e("s_cbranch_scc1 L_nopub")
        if cmode == 'ack':
            publish("s58", "sc1", ("s_waitcnt vmcnt(0)", BY))
        else:
            publish("s58", "sc1", (BY,) if cmode == 'iss' else ())
        e("s_branch L_pub")
        lab("L_nopub")
        if cmode == 'ack': e("s_waitcnt vmcnt(0)")
        if cmode in ('ack', 'iss'): e(BY)
    lab("L_pub")
    e("s_or_b32 s57, s2, s3")
    e("s_cmp_lg_u32 s57, 0")
    e(f"s_cbranch_scc1 {'L_fin' if ts else 'L_done'}")
    e("s_mov_b32 s90, 0")
    e(f"s_mov_b32 s57, {F_OFF + 112*128}")
    e("v_min_u32 v44, 47, v2")
    e("v_mul_u32_u24 v44, 384, v44")
    lab("L_pollE")
    e("s_add_u32 s90, s90, 1")
    e(f"s_cmp_ge_u32 s90, {spin}")
    e("s_cbranch_scc1 L_done")
    for q in range(3): e(f"buffer_load_dword v{40+q}, v44, {R(SW)}, s57 offen offset:{128*q} sc1")
    e("s_waitcnt vmcnt(0)")
    e("v_xor_b32 v3, s26, v40")
    for r in (41, 42): e(f"v_bitop3_b32 v3, v{r}, s26, v3 bitop3:0xbe")
    e("v_cmp_ne_u32 vcc, 0, v3")
    e("s_cbranch_vccnz L_pollE")
    e("s_add_u32 s57, s25, 0x01010101")
    e("v_mov_b32 v3, s57")
    e("v_mov_b32 v4, 0")
    e("s_barrier                                ; BZ")
    e("s_mov_b64 exec, 1")
    e(f"buffer_store_dword v3, v4, {R(SW)}, 0 offen offset:{EPOCH_OFF} {bumpfl}")
    e("s_mov_b64 exec, -1")
    if ts:
        lab("L_fin")
        e("s_waitcnt vmcnt(0)")
        stamp(7)
        e("s_waitcnt lgkmcnt(0)")
        if amp:
            e(f"s_cmp_lg_u32 s2, {amp[0]}")
            e("s_cbranch_scc1 L_done")
            e(f"s_cmp_lg_u32 s27, {amp[1]}")
            e("s_cbranch_scc1 L_done")
            e(f"s_sub_u32 s59, s{64+2*amp[2]}, s64")
            e("s_min_u32 s59, s59, 5000")
            e("s_mul_i32 s59, s59, 10")
            lab("L_amp")
            e("s_memrealtime s[60:61]")
            e("s_waitcnt lgkmcnt(0)")
            e(f"s_sub_u32 s62, s60, s{64+14}")
            e("s_cmp_lt_u32 s62, s59")
            e("s_cbranch_scc1 L_amp")
            e("s_endpgm")
        e("s_cmp_lg_u32 s3, 0")
        e("s_cbranch_scc1 L_done")
        e("s_lshl_b32 s57, s2, 7")
        e("s_lshl_b32 s59, s27, 4                   ; wave 4 -> +64")
        e("s_add_u32 s57, s57, s59")
        e(f"s_add_u32 s57, s57, {TS_OFF}")
        for r in range(16): e(f"v_mov_b32 v{16+r}, s{64+r}")
        e("v_mov_b32 v3, 0")
        e("s_mov_b64 exec, 1")
        for q in range(4):
            e(f"buffer_store_dwordx4 v[{16+4*q}:{19+4*q}], v3, {R(SW)}, s57 offen offset:{16*q}")
    lab("L_done")
    e("s_endpgm")
    o.append('.section .rodata,"a"\n.p2align 6')
    o.append(f".amdhsa_kernel {NAME}")
    o.append("  .amdhsa_next_free_vgpr 216\n  .amdhsa_next_free_sgpr 98\n  .amdhsa_accum_offset 216")
    o.append("  .amdhsa_group_segment_fixed_size 0\n  .amdhsa_kernarg_size 56\n  .amdhsa_user_sgpr_count 2")
    o.append("  .amdhsa_user_sgpr_kernarg_segment_ptr 1\n  .amdhsa_system_sgpr_workgroup_id_x 1\n.end_amdhsa_kernel")
    open(path, 'w').write('\n'.join(o) + '\n')

if __name__ == "__main__":
    gen('v12.s', exact=True)
    gen('v12_fast.s')
    gen('v12_ts.s', ts=True, spin=1 << 16)
    gen('v12_ts_old.s', ts=True, spin=1 << 16, gearly=False, bumpfl='sc1')
    gen('v12_ts_k1.s', ts=True, spin=1 << 16, kto=1)
```

```python
HDR = open('standalone__geglu_ffn__sampling.s.ref').read().split('\n')[:8]
WB = 1024*3584*2
name = "standalone__geglu_ffn__sampling_kernel"
def gen(path, P=192, xfirst=True):
    o = []; e = lambda s: o.append("    " + s)
    o.extend(HDR)
    o.append(f"; @launch grid=(256,1,1) block=(256,1,1) lds={160*1024}")
    o.append('.amdgcn_target "amdgcn-amd-amdhsa--gfx950"\n.text')
    o.append(f".globl {name}\n.p2align 8\n.type {name},@function\n{name}:")
    e("s_memrealtime s[80:81]")
    e("s_cmp_ge_u32 s2, 256")
    e("s_cbranch_scc1 L_done")
    e("s_load_dwordx8 s[4:11], s[0:1], 0")
    e("s_load_dwordx2 s[12:13], s[0:1], 48")
    e("v_lshrrev_b32 v1, 6, v0\n    v_and_b32 v2, 63, v0\n    v_readfirstlane_b32 s3, v1")
    e("s_and_b32 s14, s2, 7\n    s_lshr_b32 s15, s2, 3")
    e("v_lshrrev_b32 v3, 3, v2\n    v_and_b32 v5, 7, v2\n    v_lshlrev_b32 v5, 4, v5\n    v_lshl_add_u32 v6, v3, 11, v5")
    e("v_mul_u32_u24 v4, 7168, v3\n    v_add_u32 v4, v4, v5")
    e("s_waitcnt lgkmcnt(0)")
    ptr = {'x': 4, 'wg': 6, 'wu': 8, 'wd': 10, 'ws': 12}
    srd = {'x': 16, 'wg': 20, 'wu': 24, 'wd': 28, 'ws': 32}
    sz = {'x': 131072, 'wg': WB, 'wu': WB, 'wd': WB, 'ws': 1 << 28}
    for b in ptr:
        e(f"s_mov_b32 s{srd[b]}, s{ptr[b]}\n    s_and_b32 s{srd[b]+1}, s{ptr[b]+1}, 0xffff\n    s_mov_b32 s{srd[b]+2}, {sz[b]}\n    s_mov_b32 s{srd[b]+3}, 0x00020000")
    S = lambda b: f"s[{srd[b]}:{srd[b]+3}]"
    e("s_cmp_ge_u32 s15, 14")
    e("s_cbranch_scc1 L_pf")
    e("s_lshr_b32 s36, s15, 1\n    s_lshl_b32 s36, s36, 7\n    s_mul_i32 s40, s14, 896\n    s_add_u32 s40, s40, s36")
    e(f"s_and_b32 s37, s15, 1\n    s_mul_i32 s36, s37, {512*7168}\n    s_add_u32 s40, s40, s36")
    e(f"s_mul_i32 s36, s3, {8*7168}\n    s_add_u32 s40, s40, s36")
    e("s_lshl_b32 s42, s3, 15\n    s_lshl_b32 s36, s37, 10\n    s_add_u32 s42, s42, s36\n    s_add_u32 s43, s42, 16384")
    e("s_lshl_b32 s44, s3, 11\n    s_mov_b32 m0, s44")
    def xi():
        e(f"buffer_load_dwordx4 v6, {S('x')}, s42 offen lds")
        e("s_add_u32 s42, s42, 128")
        e(f"buffer_load_dwordx4 v6, {S('x')}, s43 offen lds")
        e("s_add_u32 s43, s43, 128")
    nlead = P // 32
    for it in range(16):
        if it == (0 if xfirst else nlead):
            for _ in range(8): xi()
        if it >= 8: e("s_waitcnt vmcnt(30)")
        e(f"buffer_load_dwordx4 v4, {S('wg')}, s40 offen lds")
        e(f"buffer_load_dwordx4 v4, {S('wu')}, s40 offen lds")
        e(f"s_add_u32 s40, s40, {32*7168}")
        e("s_barrier")
    e("s_waitcnt vmcnt(0)\n    s_barrier\n    s_memrealtime s[82:83]\n    s_mov_b64 s[84:85], 0")
    e("s_branch L_fin")
    o.append("L_pf:")
    e("s_sub_u32 s38, s15, 14")
    e("s_and_b32 s39, s38, 15")
    e("s_cmp_lg_u32 s3, 0\n    s_cbranch_scc1 L_nopf")
    e("v_lshlrev_b32 v7, 7, v2\n    s_lshl_b32 s36, s39, 13")
    e(f"buffer_load_dword v11, v7, {S('x')}, s36 offen")
    e("v_mul_u32_u24 v9, 9363, v2\n    v_lshrrev_b32 v9, 16, v9\n    v_mul_u32_u24 v5, 7, v9\n    v_sub_u32 v5, v2, v5\n    v_min_u32 v9, 8, v9\n    v_mul_u32_u24 v9, 7168, v9\n    v_lshl_add_u32 v9, v5, 7, v9")
    e("s_bitcmp1_b32 s38, 0\n    s_cselect_b64 s[48:49], s[24:25], s[20:21]")
    e(f"s_mov_b32 s50, {WB}\n    s_mov_b32 s51, 0x00020000")
    e(f"s_lshr_b32 s36, s38, 1\n    s_mul_i32 s36, s36, {9*7168}\n    s_mul_i32 s40, s14, 896\n    s_add_u32 s40, s40, s36\n    s_add_u32 s40, s40, {P*7168}")
    n = -(-(512 - P) // 81)
    for t in range(n):
        e(f"s_cmp_ge_u32 s40, {512*7168}\n    s_cbranch_scc1 L_nopf")
        e("buffer_load_dword v12, v9, s[48:51], s40 offen")
        e(f"s_add_u32 s41, s40, {512*7168}")
        e("buffer_load_dword v13, v9, s[48:51], s41 offen")
        e(f"s_add_u32 s40, s40, {81*7168}")
    o.append("L_nopf:")
    e("s_barrier")
    e(f"s_mul_i32 s41, s14, {448*2048}\n    s_lshl_b32 s36, s39, 7\n    s_add_u32 s41, s41, s36\n    s_lshl_b32 s36, s3, 14\n    s_add_u32 s41, s41, s36\n    s_lshl_b32 s36, s3, 10\n    s_mov_b32 m0, s36")
    for i in range(14):
        e("s_nop 0")
        e(f"buffer_load_dwordx4 v6, {S('wd')}, s41 offen lds")
        e("s_add_u32 m0, m0, 4096\n    s_add_u32 s41, s41, 65536")
    e("s_waitcnt vmcnt(0)\n    s_barrier\n    s_memrealtime s[84:85]\n    s_mov_b64 s[82:83], 0")
    o.append("L_fin:")
    e("s_waitcnt lgkmcnt(0)")
    e(f"s_lshl_b32 s36, s2, 7\n    s_add_u32 s36, s36, {128<<20}")
    for r in range(6): e(f"v_mov_b32 v{4+r}, s{80+r}")
    e("v_mov_b32 v3, 0\n    v_cmp_eq_u32 vcc, 0, v0\n    s_and_b64 exec, exec, vcc\n    s_cbranch_execz L_done")
    e("buffer_store_dwordx4 v[4:7], v3, s[32:35], s36 offen")
    e("buffer_store_dwordx2 v[8:9], v3, s[32:35], s36 offen offset:16")
    o.append("L_done:")
    e("s_endpgm")
    o.append('.section .rodata,"a"\n.p2align 6')
    o.append(f".amdhsa_kernel {name}")
    o.append("  .amdhsa_next_free_vgpr 16\n  .amdhsa_next_free_sgpr 96\n  .amdhsa_accum_offset 16")
    o.append("  .amdhsa_group_segment_fixed_size 0\n  .amdhsa_kernarg_size 56\n  .amdhsa_user_sgpr_count 2")
    o.append("  .amdhsa_user_sgpr_kernarg_segment_ptr 1\n  .amdhsa_system_sgpr_workgroup_id_x 1\n.end_amdhsa_kernel")
    open(path, 'w').write('\n'.join(o) + '\n')
for P in (0, 96, 128, 192):
    gen(f'D_{P}.s', P=P, xfirst=False)
gen('D_96x.s', P=96, xfirst=True)
```
